```python
import torch

def _softmax(x, axis=-1):
    return torch.softmax(x, dim=axis)
def _gelu(x):
    return torch.nn.functional.gelu(x, approximate="tanh")
def _silu(x):
    return torch.nn.functional.silu(x)
def _sigmoid(x):
    return torch.sigmoid(x)
def _layernorm(x, axis=-1, eps=1e-5):
    m = x.mean(dim=axis, keepdim=True)
    v = x.var(dim=axis, keepdim=True, unbiased=False)
    return (x - m) / torch.sqrt(v + eps)
def _scatter_add(tgt, idx, src, axis=0):
    return tgt.clone().index_add_(axis, idx, src)
def _segment_sum(src, seg, n):
    out = torch.zeros((n,) + src.shape[1:], dtype=src.dtype)
    return out.index_add_(0, seg, src)
def _pad(x, pw):
    flat = tuple(v for pair in reversed(pw) for v in pair)
    return torch.nn.functional.pad(x, flat)

kernel_name = 'standalone__paged_block_table_kv_radixattention__sampling'

def setup_inputs():

    _w = (lambda a: (lambda t: t.to(torch.bfloat16) if t.is_floating_point() else t)(torch.as_tensor(a)))
    B, H, Hkv, Dh = 16, 32, 16, 128
    Lk = 4096
    bs = 16
    nb = max(2, Lk // bs)
    P = max(1, nb // 2)
    n_phys = P + B * (nb - P)
    shared = torch.arange(P, dtype=torch.int64)
    priv = P + torch.arange(B * (nb - P), dtype=torch.int64).reshape(B, nb - P)
    bt = torch.cat([torch.tile(shared[None, :], (B, 1)), priv], dim=1)
    ctx = nb * bs - (torch.arange(1, B + 1, dtype=torch.int64) * 2654435761) % max(1, (nb * bs - P * bs) // 2)
    return {
        "q": _w((lambda *s: torch.randn(*s, dtype=torch.bfloat16) * 0.8)(B, H, Dh)),
        "k_cache": _w((lambda *s: torch.randn(*s, dtype=torch.bfloat16) * 0.8)(n_phys, bs, Hkv, Dh)),
        "v_cache": _w((lambda *s: torch.randn(*s, dtype=torch.bfloat16) * 0.05)(n_phys, bs, Hkv, Dh)),
        "block_table": _w(bt.to(torch.int64)),
        "ctx_lens": _w(torch.as_tensor(ctx).to(torch.int64)),
    }

def reference(q, k_cache, v_cache, block_table, ctx_lens):
    B, H, Dh = q.shape
    n_phys, bs, Hkv, _ = k_cache.shape
    nb = block_table.shape[1]
    Lk = nb * bs
    rep = H // Hkv
    k = k_cache[block_table].reshape(B, Lk, Hkv, Dh)
    v = v_cache[block_table].reshape(B, Lk, Hkv, Dh)
    k = (lambda x, n, axis: torch.repeat_interleave(x, n, dim=axis))(k, rep, axis=2)
    v = (lambda x, n, axis: torch.repeat_interleave(x, n, dim=axis))(v, rep, axis=2)
    scores = torch.einsum("bhd,bkhd->bhk", q, k) * (Dh ** -0.5)
    pos = torch.arange(Lk)
    valid = pos[None, :] < ctx_lens[:, None]
    scores = torch.where(valid[:, None, :], scores, -1e9)
    p = _softmax(scores, axis=-1)
    return torch.einsum("bhk,bkhd->bhd", p, v)
```

```python
import sys, struct

KN = "standalone__paged_block_table_kv_radixattention__sampling_kernel"
KVB = 2176 * 65536
WSB = 570425344

HEADER = """; Kernarg layout for this problem (64 bytes, ptrs only, base s[0:1]):
"""


def f2u(x):
    return struct.unpack("<I", struct.pack("<f", x))[0]


L_K = 0
L_BT = 0x8000
L_Q = 0xC000
L_TAB = 0xE000
NTAB = 128
L_PROG = 0xF000
L_CTL = 0xF400
C_NONCE = 0
C_GO = 4
C_TOTAL = 8
C_RDONE = 12
C_HASSH = 16
C_META = 32
L_PD = 0xF500
REC = 1040
L_SD = L_PD + 16 * REC
LDS_BYTES = L_SD + 64 * REC

B_SH, B_NULL, B_PRE, B_POST, B_POSTSH, B_END, B_VALID = 5, 6, 7, 8, 9, 10, 11
FLAGS_ANY = (1 << B_POST) | (1 << B_POSTSH) | (1 << B_END)
CT_NULL = (1 << B_NULL) | (1 << B_VALID)
OOB = 0x80000000
WS_CNT = 256 * 64 * 2048
CNT_STRIDE = 4352
SLOT_OWN, SLOT_MARK = 48, 63
NEG_BIG = f2u(-3.0e38)
C_SCALE = f2u(0.08838834764831845 * 1.4426950408889634)
MASKV = f2u(-1.0e9 / 0.08838834764831845)


class G:
    def __init__(self, **opt):
        self.o = []
        self.opt = dict(mapping="head", steal=1, share=1, theta=200, ch=2, lead=1, minrem=1, stamp=0,
                        spin=24, force_fallback=0, nt=1, delay_pub=0)
        self.opt.update(opt)
        self.uid = 0

    def __call__(self, s):
        for line in s.strip("\n").split("\n"):
            self.o.append("    " + line.strip() if not line.strip().endswith(":") else line.strip())

    def lab(self, base):
        self.uid += 1
        return f"L_{base}_{self.uid}"


S_FUEL = 9


def nap(n):
    return f"""s_sleep {n}
    s_sub_u32 s{S_FUEL}, s{S_FUEL}, 1
    s_cbranch_scc1 L_exit"""


def vr(a, n=1):
    return f"v{a}" if n == 1 else f"v[{a}:{a+n-1}]"


def sr(a, n=1):
    return f"s{a}" if n == 1 else f"s[{a}:{a+n-1}]"


def srd(g, d, lo, nbytes):
    g(f"""s_mov_b32 s{d}, s{lo}
    s_mov_b32 s{d+1}, s{lo+1}
    s_mov_b32 s{d+2}, {nbytes}
    s_mov_b32 s{d+3}, 0x20000""")


P_Q, P_K, P_V, P_BT, P_CTX, P_OUT, P_DBG, P_WS = 16, 18, 20, 22, 24, 26, 28, 30
S_WAVE, S_B, S_H = 3, 4, 5
S_T0 = 96


def stamp_end(g, x0=None, x1=None):
    if not g.opt["stamp"]:
        return
    g(f"""s_memrealtime s[98:99]
    s_mov_b32 s92, s{P_WS}
    s_mov_b32 s93, s{P_WS+1}
    s_mov_b32 s94, {WSB}
    s_mov_b32 s95, 0x20000
    s_mul_i32 s90, s2, 6
    s_add_u32 s90, s90, s{S_WAVE}
    s_lshl_b32 s90, s90, 4
    s_add_u32 s90, s90, {WSB - (1 << 20)}
    s_waitcnt lgkmcnt(0)
    s_mov_b64 exec, 1
    v_mov_b32 v4, s96
    v_mov_b32 v5, s97
    v_mov_b32 v6, s98
    v_mov_b32 v7, s99
    v_mov_b32 v2, 0
    buffer_store_dwordx4 v[4:7], v2, s[92:95], s90 offen""")
    if x0 is not None:
        g(f"""v_mov_b32 v8, {x0}
        v_mov_b32 v9, 0
        v_mov_b32 v10, {x1}
        v_mov_b32 v11, 0
        s_add_u32 s90, s90, {1 << 16}
        buffer_store_dwordx4 v[8:11], v2, s[92:95], s90 offen""")


def streaming(g):
    nt = " nt" if g.opt["nt"] else ""
    LANE, COL, GG = 1, 2, 3
    KOFF, VOFF, KRD, MSK = 4, 8, 12, 16
    TOK, ENT, EC, ES, PROGA, QRD, PDA, SDA = 20, 21, 22, 23, 24, 25, 26, 27
    T0, T1, T2, T3, MN, AL = 28, 29, 30, 31, 32, 33
    MP, LP = 34, 35
    MS0, LS0, MS1, LS1 = 36, 37, 38, 39
    ACCP = 40
    S = 44
    PB = 52
    QO = 56
    QS = 72
    KF = 104
    AT = 120
    VR = 136
    ACCS = 168
    ROW = T3
    MN1, AL1 = 232, 233
    nv = 234
    KS, VS, BS, QSRD = 32, 36, 40, 44
    CT = 48
    SOFF, CN, PROG, SC, PLO, PHI, MV, LK, SP = 50, 51, 52, 53, 54, 55, 56, 57, 58
    X0, X1, X2, X3, X4 = 60, 61, 62, 63, 64
    CTXR = 66

    def issue(p):
        g(f"s_add_u32 m0, s{LK}, {p*4096}")
        g("s_nop 0")
        for r in range(4):
            g(f"buffer_load_dwordx4 v{KOFF+r}, {sr(KS,4)}, s{SOFF} offen offset:{r*1024}{nt} lds")
        for r in range(4):
            g(f"buffer_load_dwordx4 {vr(VR+p*16+r*4,4)}, v{VOFF+r}, {sr(VS,4)}, s{SOFF} offen{nt}")

    g("L_stream:")
    g(f"""v_and_b32 v{COL}, 15, v{LANE}
    v_lshrrev_b32 v{GG}, 4, v{LANE}
    v_lshlrev_b32 v{T0}, 4, v{LANE}
    v_and_b32 v{T1}, 1, v{LANE}
    v_lshlrev_b32 v{T1}, 8, v{T1}
    v_lshl_add_u32 v{QRD}, v{GG}, 4, v{T1}
    s_lshl_b32 s{X0}, s{S_B}, 10
    s_lshl2_add_u32 s{X0}, s{S_WAVE}, s{X0}
    s_lshl_b32 s{X1}, s{S_B}, 2
    s_lshl_b32 s{X2}, s{S_B}, 13
    s_lshl_b32 s{X3}, s{S_H}, 9
    s_add_u32 s{X2}, s{X2}, s{X3}
    s_waitcnt lgkmcnt(0)
    s_load_dword s{CTXR}, {sr(P_CTX,2)}, s{X1}""")
    srd(g, BS, P_BT, 16384)
    g(f"buffer_load_dword v{ROW}, v{T0}, {sr(BS,4)}, s{X0} offen")
    srd(g, QSRD, P_Q, 131072)
    for j in range(4):
        g(f"buffer_load_dwordx4 {vr(QO+4*j,4)}, v{QRD}, {sr(QSRD,4)}, s{X2} offen offset:{64*j}")
    g("s_barrier")
    srd(g, KS, P_K, KVB)
    srd(g, VS, P_V, KVB)
    for r in range(4):
        g(f"""v_add_u32 v{T1}, {4*r}, v{GG}
        v_xor_b32 v{T2}, v{T1}, v{COL}
        v_lshlrev_b32 v{T2}, 4, v{T2}
        v_lshl_add_u32 v{KOFF+r}, v{T1}, 12, v{T2}""")
        if r:
            g(f"v_subrev_u32 v{KOFF+r}, {r*1024}, v{KOFF+r}")
    g(f"""v_lshlrev_b32 v{T1}, 14, v{GG}
    v_lshl_add_u32 v{VOFF}, v{COL}, 4, v{T1}
    v_add_u32 v{VOFF+1}, 0x1000, v{VOFF}
    v_add_u32 v{VOFF+2}, 0x2000, v{VOFF}
    v_add_u32 v{VOFF+3}, 0x3000, v{VOFF}
    s_lshl_b32 s{LK}, s{S_WAVE}, 13
    s_lshl_b32 s{X3}, s{S_H}, 8
    s_waitcnt lgkmcnt(0)""")
    g(f"""s_max_i32 s{X0}, s{CTXR}, 0
    s_min_i32 s{X0}, s{X0}, 4096
    s_add_u32 s{X1}, s{X0}, 63
    s_lshr_b32 s{X1}, s{X1}, 6
    s_cmp_eq_u32 s{X1}, 0
    s_cselect_b32 s{X1}, 64, s{X1}
    s_cselect_b32 s{X4}, 1, 0
    s_lshl_b32 s{X2}, s{S_WAVE}, 4
    s_sub_i32 s{X0}, s{X0}, s{X2}
    s_waitcnt vmcnt(4)""")
    for o in range(2):
        g(f"""s_sub_i32 s{X2}, s{X1}, {1+o}
        s_max_i32 s{CN}, s{X2}, 0
        v_readlane_b32 s{SOFF}, v{ROW}, s{CN}
        s_lshl_b32 s{CN}, s{CN}, 6
        s_sub_i32 s{CN}, s{X0}, s{CN}
        s_max_i32 s{CN}, s{CN}, 0
        s_min_i32 s{CN}, s{CN}, 16
        s_lshl_b32 s{SOFF}, s{SOFF}, 16
        s_add_u32 s{SOFF}, s{SOFF}, s{X3}
        s_or_b32 s{SP}, s{CN}, s{X4}
        s_cmp_lt_i32 s{X2}, 0
        s_cselect_b32 s{SP}, 0, s{SP}
        s_cmp_eq_u32 s{SP}, 0
        s_cselect_b32 s{SOFF}, {OOB}, s{SOFF}
        s_cselect_b32 s{CT+o}, {CT_NULL}, s{CN}""")
        issue(o)
        if o == 0:
            g(f"""v_lshrrev_b32 v{T1}, 1, v{COL}
            v_lshl_add_u32 v{T1}, v{T1}, 13, v{QRD}
            s_lshl_b32 s{CN}, s{S_H}, 9
            s_add_u32 s{SP}, s{CN}, 0x10000""")
            for u in range(2):
                for j in range(4):
                    g(f"buffer_load_dwordx4 {vr(QS+16*u+4*j,4)}, v{T1}, {sr(QSRD,4)}, s{CN if u == 0 else SP} offen offset:{64*j}")
    for j in range(4):
        g(f"""v_add_u32 v{T1}, {4*j}, v{GG}
        v_xor_b32 v{T1}, v{T1}, v{COL}
        v_lshlrev_b32 v{T1}, 4, v{T1}
        v_lshl_add_u32 v{T1}, v{COL}, 8, v{T1}
        v_add_u32 v{KRD+j}, s{LK}, v{T1}""")
    g(f"""v_mov_b32 v{T1}, 0xffff
    v_and_b32 v{T2}, 2, v{COL}
    v_lshlrev_b32 v{T2}, 3, v{T2}
    v_lshlrev_b32 v{T1}, v{T2}, v{T1}
    v_lshrrev_b32 v{T2}, 2, v{COL}""")
    for j in range(4):
        g(f"""v_cmp_eq_u32 vcc, {j}, v{T2}
        s_nop 1
        v_cndmask_b32 v{MSK+j}, 0, v{T1}, vcc""")
    g(f"""v_lshlrev_b32 v{TOK}, 2, v{GG}
    s_lshl_b32 s{X0}, s{S_WAVE}, 2
    s_add_u32 s{X0}, s{X0}, {L_TAB}
    v_mov_b32 v{ENT}, s{X0}
    s_lshl_b32 s{X0}, s{S_WAVE}, 8
    s_add_u32 s{X0}, s{X0}, {L_PROG}
    v_lshl_add_u32 v{PROGA}, v{LANE}, 2, s{X0}
    v_add_u32 v{QRD}, {L_Q}, v{QRD}
    s_mul_i32 s{X0}, s{S_WAVE}, {REC}
    s_add_u32 s{X0}, s{X0}, {L_PD}
    v_lshl_add_u32 v{PDA}, v{LANE}, 4, s{X0}
    s_mul_i32 s{X0}, s{S_WAVE}, {16*REC}
    s_add_u32 s{X0}, s{X0}, {L_SD}
    v_lshrrev_b32 v{T1}, 1, v{COL}
    v_mul_u32_u24 v{T1}, {REC}, v{T1}
    v_lshl_add_u32 v{T1}, v{GG}, 6, v{T1}
    v_and_b32 v{T2}, 1, v{COL}
    v_lshl_add_u32 v{T1}, v{T2}, 2, v{T1}
    v_add_u32 v{SDA}, s{X0}, v{T1}
    s_mov_b32 s{PROG}, 0
    s_mov_b32 s{SC}, {C_SCALE:#x}
    s_mov_b32 s{PLO}, 0x05040100
    s_mov_b32 s{PHI}, 0x07060302
    s_mov_b32 s{MV}, {MASKV:#x}
    v_mov_b32 v{MP}, {NEG_BIG:#x}
    v_mov_b32 v{LP}, 0
    v_mov_b32 v{MS0}, {NEG_BIG:#x}
    v_mov_b32 v{MS1}, {NEG_BIG:#x}
    v_mov_b32 v{LS0}, 0
    v_mov_b32 v{LS1}, 0""")
    for i in range(4):
        g(f"v_mov_b32 v{ACCP+i}, 0")
    for i in range(64):
        g(f"v_mov_b32 v{ACCS+i}, 0")

    def xmax(t, u):
        g(f"""v_mov_b32 v{u}, v{t}
        s_nop 1
        v_permlane32_swap_b32 v{t}, v{u}
        v_max_f32 v{t}, v{t}, v{u}
        v_mov_b32 v{u}, v{t}
        s_nop 1
        v_permlane16_swap_b32 v{t}, v{u}
        v_max_f32 v{t}, v{t}, v{u}""")

    def xsum(t, u):
        g(f"""v_mov_b32 v{u}, v{t}
        s_nop 1
        v_permlane32_swap_b32 v{t}, v{u}
        v_add_f32 v{t}, v{t}, v{u}
        v_mov_b32 v{u}, v{t}
        s_nop 1
        v_permlane16_swap_b32 v{t}, v{u}
        v_add_f32 v{t}, v{t}, v{u}""")

    for p in range(2):
        c = CT + p
        V = VR + 16 * p
        g(f"L_it{p}:")
        g(f"""ds_read_b32 v{EC}, v{ENT} offset:16
        ds_read_b32 v{ES}, v{ENT}
        s_mov_b32 s{SP}, {p}
        s_waitcnt vmcnt(8)
        s_bitcmp1_b32 s{c}, {B_NULL}
        s_cbranch_scc1 L_post{p}""")
        for j in range(4):
            g(f"ds_read_b128 {vr(KF+4*j,4)}, v{KRD+j} offset:{p*4096}")
        g(f"""s_bitcmp1_b32 s{c}, {B_SH}
        s_cbranch_scc1 L_sh{p}
        s_bitcmp1_b32 s{c}, {B_PRE}
        s_cbranch_scc1 L_pre{p}
        L_priv{p}:""")
        for j in range(4):
            g(f"s_waitcnt lgkmcnt({3-j})")
            g(f"v_mfma_f32_16x16x32_bf16 {vr(S,4)}, {vr(KF+4*j,4)}, {vr(QO+4*j,4)}, {'0' if j == 0 else vr(S,4)}")
        g(f"""s_and_b32 s{X0}, s{c}, 31
        s_cmp_eq_u32 s{X0}, 16
        s_nop 5
        s_cbranch_scc0 L_mask{p}
        L_nomask{p}:
        v_max3_f32 v{T0}, v{S}, v{S+1}, v{S+2}
        v_max_f32 v{T0}, v{T0}, v{S+3}""")
        xmax(T0, T1)
        g(f"""v_mul_f32 v{T0}, s{SC}, v{T0}
        v_max_f32 v{MN}, v{MP}, v{T0}
        v_sub_f32 v{AL}, v{MP}, v{MN}""")
        for r in range(4):
            g(f"v_fma_f32 v{S+r}, v{S+r}, s{SC}, -v{MN}")
        g(f"v_exp_f32 v{AL}, v{AL}")
        for r in range(4):
            g(f"v_exp_f32 v{S+r}, v{S+r}")
        g(f"v_mov_b32 v{MP}, v{MN}")
        for r in range(4):
            q = r & 1
            g(f"v_mul_f32_dpp v{ACCP+r}, v{AL}, v{ACCP+r} quad_perm:[{q},{q},{q},{q}] row_mask:0xf bank_mask:0xf")
        for r in range(4):
            g(f"v_cvt_pk_bf16_f32 v{T0+r}, v{S+r}, v{S+r}")
        for r in range(4):
            for j in range(4):
                g(f"v_and_b32 v{AT+4*r+j}, v{T0+r}, v{MSK+j}")
        g(f"""v_fma_f32 v{LP}, v{LP}, v{AL}, v{S}
        v_add_f32 v{T0}, v{S+1}, v{S+2}""")
        for r in range(4):
            g(f"v_mfma_f32_16x16x32_bf16 {vr(ACCP,4)}, {vr(AT+4*r,4)}, {vr(V+4*r,4)}, {vr(ACCP,4)}")
        g(f"""v_add_f32 v{T0}, v{T0}, v{S+3}
        v_add_f32 v{LP}, v{LP}, v{T0}
        L_post{p}:
        s_and_b32 s{X0}, s{c}, {FLAGS_ANY}
        s_mov_b32 s{X1}, s{c}
        s_cbranch_scc1 L_flags
        L_next{p}:
        s_waitcnt lgkmcnt(0)
        v_readfirstlane_b32 s{CN}, v{EC}
        v_readfirstlane_b32 s{SOFF}, v{ES}
        s_cmp_eq_u32 s{CN}, 0
        s_cbranch_scc1 L_retry{p}
        L_got{p}:
        s_add_u32 s{PROG}, s{PROG}, 1
        v_add_u32 v{ENT}, 32, v{ENT}
        v_mov_b32 v{T0}, s{PROG}
        ds_write_b32 v{PROGA}, v{T0}
        L_issue{p}:
        s_mov_b32 s{c}, s{CN}""")
        issue(p)
        if p == 1:
            g("s_branch L_it0")

    for p in range(2):
        c = CT + p
        V = VR + 16 * p
        g(f"""L_retry{p}:
        ds_read_b32 v{EC}, v{ENT} offset:16
        ds_read_b32 v{ES}, v{ENT}
        s_waitcnt lgkmcnt(0)
        v_readfirstlane_b32 s{CN}, v{EC}
        v_readfirstlane_b32 s{SOFF}, v{ES}
        s_cmp_lg_u32 s{CN}, 0
        s_cbranch_scc1 L_got{p}
        s_nop 2
        s_mov_b32 s{SOFF}, {OOB}
        s_mov_b32 s{CN}, {CT_NULL}
        s_cmp_lg_u32 s{CT+1-p}, {CT_NULL}
        s_cbranch_scc1 L_issue{p}
        {nap(2)}
        s_branch L_issue{p}
        L_mask{p}:
        v_mov_b32 v{T1}, s{MV}""")
        for r in range(4):
            g(f"""v_add_u32 v{T0}, {r}, v{TOK}
            v_cmp_gt_u32 vcc, s{X0}, v{T0}
            s_nop 1
            v_cndmask_b32 v{S+r}, v{T1}, v{S+r}, vcc""")
        g(f"s_branch L_nomask{p}")
        g(f"""L_pre{p}:
        s_bfe_u32 s{X0}, s{c}, 0x4000c
        s_lshl_b32 s{X0}, s{X0}, 9
        v_add_u32 v{T0}, s{X0}, v{QRD}""")
        for j in range(4):
            g(f"ds_read_b128 {vr(QO+4*j,4)}, v{T0} offset:{64*j}")
        g(f"""v_mov_b32 v{MP}, {NEG_BIG:#x}
        v_mov_b32 v{LP}, 0""")
        for i in range(4):
            g(f"v_mov_b32 v{ACCP+i}, 0")
        g(f"""s_waitcnt lgkmcnt(0)
        s_branch L_priv{p}""")
        g(f"L_sh{p}:")
        for e in range(8):
            m, hb = e >> 1, e & 1
            sel = PHI if hb else PLO
            g(f"v_perm_b32 v{AT+2*e}, v{V+4+m}, v{V+m}, s{sel}")
            g(f"v_perm_b32 v{AT+2*e+1}, v{V+12+m}, v{V+8+m}, s{sel}")
        if p == 0:
            g("s_branch L_shc")
    g("L_shc:")
    for j in range(4):
        g(f"s_waitcnt lgkmcnt({3-j})")
        for u in range(2):
            g(f"v_mfma_f32_16x16x32_bf16 {vr(S+4*u,4)}, {vr(KF+4*j,4)}, {vr(QS+16*u+4*j,4)}, {'0' if j == 0 else vr(S+4*u,4)}")
    g("s_nop 7")
    g(f"""v_max3_f32 v{T0}, v{S}, v{S+1}, v{S+2}
    v_max3_f32 v{T2}, v{S+4}, v{S+5}, v{S+6}
    v_max_f32 v{T0}, v{T0}, v{S+3}
    v_max_f32 v{T2}, v{T2}, v{S+7}
    v_mov_b32 v{T1}, v{T0}
    v_mov_b32 v{T3}, v{T2}
    s_nop 0
    v_permlane32_swap_b32 v{T0}, v{T1}
    v_permlane32_swap_b32 v{T2}, v{T3}
    v_max_f32 v{T0}, v{T0}, v{T1}
    v_max_f32 v{T2}, v{T2}, v{T3}
    v_mov_b32 v{T1}, v{T0}
    v_mov_b32 v{T3}, v{T2}
    s_nop 0
    v_permlane16_swap_b32 v{T0}, v{T1}
    v_permlane16_swap_b32 v{T2}, v{T3}
    v_max_f32 v{T0}, v{T0}, v{T1}
    v_max_f32 v{T2}, v{T2}, v{T3}
    v_mul_f32 v{T0}, s{SC}, v{T0}
    v_mul_f32 v{T2}, s{SC}, v{T2}
    v_max_f32 v{MN}, v{MS0}, v{T0}
    v_max_f32 v{MN1}, v{MS1}, v{T2}
    v_sub_f32 v{AL}, v{MS0}, v{MN}
    v_sub_f32 v{AL1}, v{MS1}, v{MN1}
    v_min_f32 v{T0}, v{AL}, v{AL1}
    v_cmp_gt_f32 vcc, 0, v{T0}""")
    for r in range(4):
        g(f"v_fma_f32 v{S+r}, v{S+r}, s{SC}, -v{MN}")
        g(f"v_fma_f32 v{S+4+r}, v{S+4+r}, s{SC}, -v{MN1}")
    g(f"""v_exp_f32 v{AL}, v{AL}
    v_exp_f32 v{AL1}, v{AL1}""")
    for r in range(8):
        g(f"v_exp_f32 v{S+r}, v{S+r}")
    g(f"""v_mov_b32 v{MS0}, v{MN}
    v_mov_b32 v{MS1}, v{MN1}
    s_cbranch_vccz L_shnr""")
    for i in range(32):
        g(f"v_mul_f32 v{ACCS+i}, v{AL}, v{ACCS+i}")
    for i in range(32):
        g(f"v_mul_f32 v{ACCS+32+i}, v{AL1}, v{ACCS+32+i}")
    g(f"""L_shnr:
    v_cvt_pk_bf16_f32 v{PB}, v{S}, v{S+1}
    v_cvt_pk_bf16_f32 v{PB+1}, v{S+2}, v{S+3}
    v_cvt_pk_bf16_f32 v{PB+2}, v{S+4}, v{S+5}
    v_cvt_pk_bf16_f32 v{PB+3}, v{S+6}, v{S+7}
    v_fma_f32 v{LS0}, v{LS0}, v{AL}, v{S}
    v_fma_f32 v{LS1}, v{LS1}, v{AL1}, v{S+4}""")
    k = 0
    extra = [f"v_add_f32 v{T0}, v{S+1}, v{S+2}", f"v_add_f32 v{T2}, v{S+5}, v{S+6}",
             f"v_add_f32 v{T0}, v{T0}, v{S+3}", f"v_add_f32 v{T2}, v{T2}, v{S+7}",
             f"v_add_f32 v{LS0}, v{LS0}, v{T0}", f"v_add_f32 v{LS1}, v{LS1}, v{T2}"]
    for u in range(2):
        for e in range(8):
            a = ACCS + 32 * u + 4 * e
            g(f"v_mfma_f32_16x16x16_bf16 {vr(a,4)}, {vr(AT+2*e,2)}, {vr(PB+2*u,2)}, {vr(a,4)}")
            if k < len(extra):
                g(extra[k]); k += 1
    g(f"""s_cmp_eq_u32 s{SP}, 0
    s_cbranch_scc1 L_post0
    s_branch L_post1""")

    g(f"""L_flags:
    s_bitcmp1_b32 s{X1}, {B_POSTSH}
    s_cbranch_scc0 L_fl_priv""")
    xsum(LS0, T0)
    xsum(LS1, T0)
    for u in range(2):
        for e in range(8):
            for r in range(4):
                off = u * 8 * REC + r * 16 + (e >> 1) * 256 + (e & 1) * 8
                g(f"ds_write_b32 v{SDA}, v{ACCS+32*u+4*e+r} offset:{off}")
    g(f"""v_and_b32 v{T0}, 1, v{COL}
    v_lshl_add_u32 v{T0}, v{T0}, 2, v{SDA}
    s_mov_b64 exec, 0xffff
    ds_write_b64 v{T0}, {vr(MS0,2)} offset:1024
    ds_write_b64 v{T0}, {vr(MS1,2)} offset:{1024+8*REC}
    s_mov_b64 exec, -1
    s_bitset1_b32 s{PROG}, 16
    v_mov_b32 v{T0}, s{PROG}
    s_waitcnt lgkmcnt(0)
    ds_write_b32 v{PROGA}, v{T0}
    L_fl_priv:
    s_bitcmp1_b32 s{X1}, {B_POST}
    s_cbranch_scc0 L_fl_end""")
    xsum(LP, T0)
    g(f"""s_bfe_u32 s{X0}, s{PROG}, 0x20008
    s_mul_i32 s{X0}, s{X0}, {4*REC}
    v_add_u32 v{T0}, s{X0}, v{PDA}
    ds_write_b128 v{T0}, {vr(ACCP,4)}
    v_lshlrev_b32 v{T1}, 3, v{LANE}
    v_sub_u32 v{T0}, v{T0}, v{T1}
    s_mov_b64 exec, 3
    ds_write_b64 v{T0}, {vr(MP,2)} offset:1024
    s_mov_b64 exec, -1
    s_add_u32 s{PROG}, s{PROG}, 0x100
    v_mov_b32 v{T0}, s{PROG}
    s_waitcnt lgkmcnt(0)
    ds_write_b32 v{PROGA}, v{T0}
    L_fl_end:
    s_bitcmp1_b32 s{X1}, {B_END}
    s_cbranch_scc1 L_stream_done
    s_cmp_eq_u32 s{SP}, 0
    s_cbranch_scc1 L_next0
    s_branch L_next1
    L_stream_done:
    s_waitcnt lgkmcnt(0)""")
    stamp_end(g)
    g("s_endpgm")
    return nv


def scheduler(g):
    o = g.opt
    D = 2
    LANE = 1
    A16, T0, T1, T2, T3, VG, VSUM, VX, VCAP, VLO, VHI, VF, VNCH, VSP = 2, 3, 4, 5, 6, 7, 8, 9, 10, 11, 12, 13, 14, 15
    SO = 16
    CTV = 20
    POS, PRA, ZERO = 24, 25, 26
    R0 = 32
    BS, QSRD, WSRD = 32, 36, 40
    CX = 64
    GMIN, CMIN, SG, GSUM, X0, X1, X2, X3, X4, X5 = 44, 45, 46, 47, 48, 49, 50, 51, 52, 53
    M0_, M1_ = 54, 56
    KPUB, MYG, MYF, MYN, TAG, GAM, NFL, SHM, SPM = 58, 59, 60, 61, 62, 63, 80, 81, 82
    OWNM = 83
    CB = 84
    TRY, EB, EH, EO0, EO1, EFL = 86, 87, 88, 89, 6, 7
    NSTEAL = 8

    g("L_sched:")
    g(f"""v_lshlrev_b32 v{A16}, 4, v{LANE}
    v_mov_b32 v{ZERO}, 0
    v_mov_b32 v{T0}, 0
    v_mov_b32 v{T1}, 0
    v_mov_b32 v{T2}, 0
    v_mov_b32 v{T3}, 0
    v_mov_b32 v{SO}, 0
    v_mov_b32 v{SO+1}, 0
    v_mov_b32 v{SO+2}, 0
    v_mov_b32 v{SO+3}, 0
    s_mov_b32 m0, {L_BT}""")
    for i in range((L_CTL + 256 - L_TAB) // 1024):
        g(f"ds_write_b128 v{A16}, {vr(SO,4)} offset:{L_TAB+i*1024}")
    g(f"""v_lshlrev_b32 v{PRA}, 2, v{LANE}
    ds_write_b32 v{PRA}, v{ZERO} offset:{L_CTL}
    s_waitcnt lgkmcnt(0)
    s_load_dwordx16 {sr(CX,16)}, {sr(P_CTX,2)}, 0""")
    srd(g, BS, P_BT, 16384)
    for q in range(4):
        g(f"s_mov_b32 s{X0}, {q*4096}")
        if q:
            g(f"s_mov_b32 m0, {L_BT+q*4096}")
            g("s_nop 0")
        for r in range(4):
            g(f"buffer_load_dwordx4 v{A16}, {sr(BS,4)}, s{X0} offen offset:{r*1024} lds")
    g("s_barrier")
    srd(g, QSRD, P_Q, 131072)
    srd(g, WSRD, P_WS, WSB)
    g(f"""s_mov_b32 s{GMIN}, 64
    s_mov_b32 s{CMIN}, 4096
    s_mov_b32 s{GSUM}, 0
    s_mov_b32 s{SPM}, 0
    v_mov_b32 v{VG}, 64
    s_waitcnt lgkmcnt(0)""")
    for b in range(16):
        c = CX + b
        g(f"""s_max_i32 s{c}, s{c}, 0
        s_min_i32 s{c}, s{c}, 4096
        s_min_u32 s{CMIN}, s{CMIN}, s{c}
        s_add_u32 s{c}, s{c}, 63
        s_lshr_b32 s{c}, s{c}, 6
        s_cselect_b32 s{X0}, 0, {1 << b}
        s_cselect_b32 s{c}, s{c}, 64
        s_or_b32 s{SPM}, s{SPM}, s{X0}
        s_min_u32 s{GMIN}, s{GMIN}, s{c}
        s_add_u32 s{GSUM}, s{GSUM}, s{c}
        v_writelane_b32 v{VG}, s{c}, {b}""")
    g(f"""s_add_u32 s{X0}, s{GMIN}, 1
    v_add_u32 v{VX}, s{X0}, v{LANE}
    v_mov_b32 v{VSUM}, 0""")
    for b in range(16):
        g(f"""v_subrev_u32 v{T0}, s{CX+b}, v{VX}
        v_max_i32 v{T0}, 0, v{T0}
        v_add_u32 v{VSUM}, v{VSUM}, v{T0}""")
    g(f"""s_lshr_b32 s{CMIN}, s{CMIN}, 6
    s_sub_i32 s{X0}, s{GMIN}, {D}
    s_max_i32 s{X0}, s{X0}, 0
    s_min_u32 s{CMIN}, s{CMIN}, s{X0}
    s_sub_u32 s{GAM}, s{S_H}, s{S_B}
    s_and_b32 s{GAM}, s{GAM}, 15
    s_waitcnt vmcnt(0)""")
    for b in range(16):
        g(f"ds_read_b128 {vr(R0+4*b,4)}, v{A16} offset:{L_BT+1024*b}")
    g(f"""s_lshl_b32 s{X0}, s{S_B}, 10
    v_add_u32 v{T0}, s{X0}, v{A16}
    s_mov_b64 {sr(M0_,2)}, 0
    s_waitcnt lgkmcnt(0)
    ds_read_b128 {vr(SO,4)}, v{T0} offset:{L_BT}""")
    for b in range(1, 16):
        for hf in range(2):
            g(f"v_cmp_ne_u64 vcc, {vr(R0+2*hf,2)}, {vr(R0+4*b+2*hf,2)}")
            g(f"s_or_b64 {sr(M0_,2)}, {sr(M0_,2)}, vcc")
    g(f"""s_ff1_i32_b64 s{SG}, {sr(M0_,2)}
    s_min_u32 s{SG}, s{SG}, s{CMIN}""")
    if not o["share"]:
        g(f"s_mov_b32 s{SG}, 0")
    g(f"""v_cmp_le_u32 vcc, s{SG}, v{VSUM}
    s_ff1_i32_b64 s{X0}, vcc
    s_add_u32 s{X0}, s{X0}, s{GMIN}
    s_add_u32 s{X0}, s{X0}, 1
    v_sub_u32 v{VCAP}, s{X0}, v{VG}
    v_max_i32 v{VCAP}, 0, v{VCAP}
    v_mov_b32 v{VHI}, v{VCAP}""")
    for sh in (1, 2, 4, 8):
        g(f"""s_nop 1
        v_add_u32_dpp v{VHI}, v{VHI}, v{VHI} row_shr:{sh} row_mask:0xf bank_mask:0xf bound_ctrl:0""")
    g(f"""v_sub_u32 v{VLO}, v{VHI}, v{VCAP}
    v_min_u32 v{VLO}, s{SG}, v{VLO}
    v_min_u32 v{VHI}, s{SG}, v{VHI}
    v_sub_u32 v{VCAP}, v{VHI}, v{VLO}
    v_cmp_lt_u32 vcc, 0, v{VCAP}
    s_and_b32 s{SHM}, vcc_lo, 0xffff""")
    g(f"""s_mul_i32 s{X1}, s{SG}, 15
    s_sub_u32 s{X1}, s{GSUM}, s{X1}
    s_mul_i32 s{X1}, s{X1}, {o['theta']}
    s_lshr_b32 s{X1}, s{X1}, 12
    v_subrev_u32 v{T0}, s{SG}, v{VG}
    v_sub_u32 v{VF}, s{X1}, v{VCAP}
    v_max_i32 v{VF}, {D}, v{VF}
    v_subrev_u32 v{T1}, {32*o['ch']}, v{T0}
    v_max_i32 v{VF}, v{VF}, v{T1}
    v_min_i32 v{VF}, v{VF}, v{T0}""")
    if not o["steal"]:
        g(f"v_mov_b32 v{VF}, v{T0}")
    chs = {1: 0, 2: 1, 4: 2}[o["ch"]]
    g(f"""v_sub_u32 v{VNCH}, v{T0}, v{VF}
    v_add_u32 v{VNCH}, {o['ch']-1}, v{VNCH}
    v_lshrrev_b32 v{VNCH}, {chs}, v{VNCH}
    s_nop 0
    v_readlane_b32 s{MYG}, v{VG}, s{S_B}
    v_readlane_b32 s{MYF}, v{VF}, s{S_B}
    v_readlane_b32 s{MYN}, v{VNCH}, s{S_B}
    v_readlane_b32 s{X2}, v{VLO}, s{S_B}
    v_readlane_b32 s{X3}, v{VHI}, s{S_B}
    s_lshl_b32 s{X4}, s{S_H}, 8
    s_waitcnt lgkmcnt(0)""")
    for i in range(4):
        g(f"v_lshl_add_u32 v{SO+i}, v{SO+i}, 16, s{X4}")
    g(f"""s_sub_u32 s{X5}, s{X3}, s{X2}
    s_lshr_b32 s{X0}, s{SPM}, s{S_B}
    s_bitcmp1_b32 s{X0}, 0
    s_cselect_b32 s{X0}, 0, 16
    s_bitset1_b32 s{X0}, {B_VALID}
    s_sub_u32 s{X1}, s{MYG}, 1
    v_sub_u32 v{T0}, s{X1}, v{LANE}
    v_cmp_le_i32 {sr(M0_,2)}, {D}, v{T0}
    v_cmp_gt_i32 vcc, s{MYF}, v{T0}
    s_and_b64 {sr(M0_,2)}, {sr(M0_,2)}, vcc
    s_sub_u32 s{X1}, s{X5}, {D}
    v_add_u32 v{POS}, s{X1}, v{T0}
    v_mov_b32 v{CTV}, s{X0}
    v_cmp_le_u32 {sr(M1_,2)}, s{X2}, v{LANE}
    v_cmp_gt_u32 vcc, s{X3}, v{LANE}
    s_and_b64 vcc, {sr(M1_,2)}, vcc
    s_or_b64 {sr(M0_,2)}, {sr(M0_,2)}, vcc
    v_subrev_u32 v{T0}, s{X2}, v{LANE}
    v_mov_b32 v{T1}, {(1 << B_VALID) | (1 << B_SH) | 16}
    v_cndmask_b32 v{POS}, v{POS}, v{T0}, vcc
    v_cndmask_b32 v{CTV}, v{CTV}, v{T1}, vcc
    s_sub_u32 s{X1}, s{X3}, 1
    v_cmp_eq_u32 {sr(M1_,2)}, s{X1}, v{LANE}
    s_and_b64 vcc, {sr(M1_,2)}, vcc
    v_or_b32 v{T1}, {1 << B_POSTSH}, v{CTV}
    v_lshlrev_b32 v{POS}, 5, v{POS}
    v_cndmask_b32 v{CTV}, v{CTV}, v{T1}, vcc
    s_mov_b64 exec, {sr(M0_,2)}
    ds_write_b128 v{POS}, {vr(SO,4)} offset:{L_TAB}
    v_mov_b32 v{CTV+1}, v{CTV}
    v_mov_b32 v{CTV+2}, v{CTV}
    v_mov_b32 v{CTV+3}, v{CTV}
    s_waitcnt lgkmcnt(0)
    ds_write_b128 v{POS}, {vr(CTV,4)} offset:{L_TAB+16}
    s_mov_b64 exec, -1
    s_bcnt1_i32_b64 s{KPUB}, {sr(M0_,2)}
    s_cmp_eq_u32 s{X5}, 0
    s_cselect_b32 s{X0}, 1, 2
    v_mov_b32 v{T0}, s{X0}
    ds_write_b32 v{ZERO}, v{T0} offset:{L_CTL+C_HASSH}
    v_and_b32 v{PRA}, 3, v{LANE}
    v_lshlrev_b32 v{PRA}, 8, v{PRA}
    s_mov_b32 s{NFL}, 0
    s_mov_b32 s{OWNM}, 0
    s_mov_b32 s{NSTEAL}, 0""")
    if o["steal"]:
        g(f"""v_lshrrev_b32 v{T0}, 5, v{LANE}
        v_and_b32 v{T1}, 31, v{LANE}
        v_lshlrev_b32 v{T1}, 4, v{T1}""")
        for i in range(8):
            g(f"""v_add_u32 v{T2}, {2*i}, v{T0}
            v_add_u32 v{T3}, s{GAM}, v{T2}
            v_and_b32 v{T3}, 15, v{T3}
            v_lshl_add_u32 v{T3}, v{T3}, 9, v{T1}
            v_lshl_add_u32 v{T3}, v{T2}, 13, v{T3}
            s_mov_b32 m0, {L_Q+1024*i}
            s_nop 0
            buffer_load_dwordx4 v{T3}, {sr(QSRD,4)}, 0 offen lds""")
        lw = g.lab("wn")
        g(f"""{lw}:
        ds_read_b32 v{T0}, v{ZERO} offset:{L_CTL+C_NONCE}
        s_waitcnt lgkmcnt(0)
        v_readfirstlane_b32 s{TAG}, v{T0}
        s_cmp_eq_u32 s{TAG}, 0
        s_cbranch_scc0 {lw}_ok
        {nap(4)}
        s_branch {lw}
        {lw}_ok:
        s_and_b32 s{TAG}, s{TAG}, 0xffffff00
        s_mul_i32 s{X0}, s{GAM}, {CNT_STRIDE}
        s_add_u32 s{X0}, s{X0}, {WS_CNT}
        s_add_u32 s{CB}, s{P_WS}, s{X0}
        s_addc_u32 s{CB+1}, s{P_WS+1}, 0
        s_lshl2_add_u32 s{X0}, s{S_B}, s{X0}
        s_add_u32 s{X1}, s{MYN}, 64
        s_or_b32 s{X1}, s{X1}, s{TAG}
        v_mov_b32 v{T0}, s{X1}
        s_mov_b64 exec, 1
        buffer_store_dword v{T0}, v{ZERO}, {sr(WSRD,4)}, s{X0} offen sc1
        s_mov_b64 exec, -1
        s_waitcnt vmcnt(0)""")

    def wait_lead():
        lw = g.lab("lead")
        g(f"""{lw}:
        ds_read_b32 v{T0}, v{PRA} offset:{L_PROG}
        s_waitcnt lgkmcnt(0)
        v_and_b32 v{T0}, 0xff, v{T0}
        v_add_u32 v{T0}, {o['lead']}, v{T0}
        v_cmp_le_u32 vcc, s{KPUB}, v{T0}
        s_cbranch_vccnz {lw}_ok
        {nap(2)}
        s_branch {lw}
        {lw}_ok:""")

    def put_ctl_entry(ctrl):
        g(f"""s_lshl_b32 s{X0}, s{KPUB}, 5
        v_mov_b32 v{POS}, s{X0}
        v_mov_b32 v{CTV}, {OOB}
        v_mov_b32 v{CTV+1}, {OOB}
        v_mov_b32 v{CTV+2}, {OOB}
        v_mov_b32 v{CTV+3}, {OOB}
        s_mov_b64 exec, 1
        ds_write_b128 v{POS}, {vr(CTV,4)} offset:{L_TAB}
        s_waitcnt lgkmcnt(0)
        v_mov_b32 v{CTV}, {ctrl}
        v_mov_b32 v{CTV+1}, {ctrl}
        v_mov_b32 v{CTV+2}, {ctrl}
        v_mov_b32 v{CTV+3}, {ctrl}
        ds_write_b128 v{POS}, {vr(CTV,4)} offset:{L_TAB+16}
        s_mov_b64 exec, -1
        s_add_u32 s{KPUB}, s{KPUB}, 1""")

    def emit_chunk(pre):
        g(f"""s_sub_u32 s{X1}, s{X1}, 1
        v_sub_u32 v{T0}, s{X1}, v{LANE}
        v_cmp_le_i32 {sr(M0_,2)}, s{EO0}, v{T0}
        v_cmp_gt_i32 vcc, s{EO1}, v{T0}
        s_and_b64 {sr(M0_,2)}, {sr(M0_,2)}, vcc
        s_sub_u32 s{X1}, s{KPUB}, s{EO0}
        v_add_u32 v{POS}, s{X1}, v{T0}
        v_lshlrev_b32 v{POS}, 5, v{POS}
        v_mov_b32 v{CTV}, s{EFL}""")
        if pre:
            g(f"""v_cmp_eq_u32 vcc, s{EO0}, v{T0}
            v_or_b32 v{T1}, {1 << B_PRE}, v{CTV}
            s_sub_u32 s{X1}, s{EO1}, 1
            v_cndmask_b32 v{CTV}, v{CTV}, v{T1}, vcc
            v_cmp_eq_u32 vcc, s{X1}, v{T0}
            v_or_b32 v{T1}, {1 << B_POST}, v{CTV}
            s_nop 0
            v_cndmask_b32 v{CTV}, v{CTV}, v{T1}, vcc""")
        g(f"""s_mov_b64 exec, {sr(M0_,2)}
        ds_write_b128 v{POS}, {vr(SO,4)} offset:{L_TAB}
        v_mov_b32 v{CTV+1}, v{CTV}
        v_mov_b32 v{CTV+2}, v{CTV}
        v_mov_b32 v{CTV+3}, v{CTV}
        s_waitcnt lgkmcnt(0)
        ds_write_b128 v{POS}, {vr(CTV,4)} offset:{L_TAB+16}
        s_mov_b64 exec, -1
        s_bcnt1_i32_b64 s{X1}, {sr(M0_,2)}
        s_add_u32 s{KPUB}, s{KPUB}, s{X1}""")

    g(f"""s_cmp_eq_u32 s{MYN}, 0
    s_cbranch_scc1 L_own_close""")
    if o["steal"]:
        wait_lead()
        g(f"""s_or_b32 s{X0}, s{SHM}, 0xc0000000
        v_mov_b32 v{T0}, s{X0}
        ds_write_b32 v{ZERO}, v{T0} offset:{L_CTL+C_GO}
        s_lshr_b32 s{X0}, s{SPM}, s{S_B}
        s_bitcmp1_b32 s{X0}, 0
        s_cselect_b32 s{EFL}, 0, 16
        s_bitset1_b32 s{EFL}, {B_VALID}
        L_own_loop:
        s_mov_b32 s{X0}, -1
        s_lshl_b32 s{X1}, s{S_B}, 2
        s_atomic_add s{X0}, {sr(CB,2)}, s{X1} glc
        s_waitcnt lgkmcnt(0)
        s_and_b32 s{X0}, s{X0}, 0xff
        s_sub_i32 s{X5}, s{X0}, 64
        s_cmp_gt_i32 s{X5}, 0
        s_cbranch_scc0 L_own_close
        s_sub_u32 s{X0}, s{MYN}, s{X5}
        s_bitset1_b32 s{OWNM}, s{X0}
        s_lshl_b32 s{X0}, s{X0}, {chs}
        s_add_u32 s{EO0}, s{X0}, s{MYF}
        s_add_u32 s{EO1}, s{EO0}, {o['ch']}
        s_sub_u32 s{X0}, s{MYG}, s{SG}
        s_min_u32 s{EO1}, s{EO1}, s{X0}
        s_mov_b32 s{X1}, s{MYG}""")
        emit_chunk(False)
        g(f"""s_cmp_eq_u32 s{X5}, 1
        s_cbranch_scc1 L_own_close""")
        wait_lead()
        g("s_branch L_own_loop")
    g(f"""L_own_close:
    s_bfm_b64 {sr(M0_,2)}, s{MYN}, 0
    s_andn2_b32 s{M0_}, s{M0_}, s{OWNM}
    s_mov_b32 s{M0_+1}, 0
    s_lshl_b64 {sr(M0_,2)}, {sr(M0_,2)}, 16
    s_or_b32 s{M0_}, s{M0_}, s{SHM}
    s_lshl_b32 s{X0}, s{S_B}, 4
    s_add_u32 s{X0}, s{X0}, s{S_H}
    v_mov_b32 v{CTV}, s{X0}
    v_mov_b32 v{CTV+1}, 0
    v_mov_b32 v{CTV+2}, s{M0_}
    v_mov_b32 v{CTV+3}, s{M0_+1}
    ds_write_b128 v{ZERO}, {vr(CTV,4)} offset:{L_CTL+C_META}
    s_mov_b32 s{NFL}, 1
    s_waitcnt lgkmcnt(0)""")
    put_ctl_entry(CT_NULL | (1 << B_POST))
    if not o["steal"]:
        wait_lead()
        g(f"""s_or_b32 s{X0}, s{SHM}, 0xc0000000
        v_mov_b32 v{T0}, s{X0}
        ds_write_b32 v{ZERO}, v{T0} offset:{L_CTL+C_GO}""")
    if o["steal"]:
        g(f"""L_steal_loop:
        s_mov_b32 s{TRY}, 0
        s_cmp_ge_u32 s{KPUB}, {NTAB - 8}
        s_cbranch_scc1 L_sched_end""")
        wait_lead()
        g(f"""s_or_b32 s{X0}, s{SHM}, 0xc0000000
        v_mov_b32 v{T0}, s{X0}
        ds_write_b32 v{ZERO}, v{T0} offset:{L_CTL+C_GO}""")
        lw = g.lab("slot")
        g(f"""{lw}:
        ds_read_b32 v{T0}, v{ZERO} offset:{L_CTL+C_RDONE}
        s_waitcnt lgkmcnt(0)
        v_readfirstlane_b32 s{X0}, v{T0}
        s_sub_u32 s{X0}, s{NFL}, s{X0}
        s_cmp_lt_u32 s{X0}, 4
        s_cbranch_scc1 L_scan
        {nap(2)}
        s_branch {lw}
        L_scan:
        s_load_dwordx16 {sr(CX,16)}, {sr(CB,2)}, 0 glc
        s_mov_b32 s{X5}, 0
        s_waitcnt lgkmcnt(0)""")
        for i in range(16):
            g(f"""s_lshl_b32 s{X0}, s{CX+i}, 24
            s_xor_b32 s{X1}, s{S_B}, {i}
            s_or_b32 s{X0}, s{X0}, s{X1}
            s_max_u32 s{X5}, s{X5}, s{X0}""")
        g(f"""s_lshr_b32 s{X0}, s{X5}, 24
        s_cmp_lt_u32 s{X0}, {64 + o['minrem']}
        s_cbranch_scc1 L_sched_end
        s_and_b32 s{EB}, s{X5}, 15
        s_xor_b32 s{EB}, s{EB}, s{S_B}
        s_mov_b32 s{X0}, -1
        s_lshl_b32 s{X1}, s{EB}, 2
        s_atomic_add s{X0}, {sr(CB,2)}, s{X1} glc
        s_lshl_b32 s{X1}, s{EB}, 10
        v_add_u32 v{T0}, s{X1}, v{A16}
        ds_read_b128 {vr(SO,4)}, v{T0} offset:{L_BT}
        v_readlane_b32 s{X2}, v{VG}, s{EB}
        v_readlane_b32 s{X3}, v{VF}, s{EB}
        v_readlane_b32 s{X4}, v{VNCH}, s{EB}
        s_add_u32 s{EH}, s{GAM}, s{EB}
        s_and_b32 s{EH}, s{EH}, 15
        s_waitcnt lgkmcnt(0)
        s_xor_b32 s{X0}, s{X0}, s{TAG}
        s_sub_u32 s{X5}, s{X0}, 65
        s_cmp_lt_u32 s{X5}, s{X4}
        s_cbranch_scc1 L_stolen
        s_add_u32 s{TRY}, s{TRY}, 1
        s_cmp_lt_u32 s{TRY}, 4
        s_cbranch_scc1 L_scan
        s_branch L_sched_end
        L_stolen:
        s_add_u32 s{NSTEAL}, s{NSTEAL}, 1
        s_sub_u32 s{X0}, s{X4}, s{X5}
        s_sub_u32 s{X0}, s{X0}, 1
        s_add_u32 s{X5}, s{X0}, 16
        s_lshl_b32 s{X0}, s{X0}, {chs}
        s_add_u32 s{EO0}, s{X0}, s{X3}
        s_add_u32 s{EO1}, s{EO0}, {o['ch']}
        s_sub_u32 s{X0}, s{X2}, s{SG}
        s_min_u32 s{EO1}, s{EO1}, s{X0}
        s_lshl_b32 s{X0}, s{EB}, 4
        s_add_u32 s{X0}, s{X0}, s{EH}
        v_mov_b32 v{CTV}, s{X0}
        v_mov_b32 v{CTV+1}, s{X5}
        s_and_b32 s{X0}, s{NFL}, 3
        s_lshl_b32 s{X0}, s{X0}, 4
        v_mov_b32 v{T0}, s{X0}
        ds_write_b64 v{T0}, {vr(CTV,2)} offset:{L_CTL+C_META}
        s_add_u32 s{NFL}, s{NFL}, 1
        s_lshl_b32 s{X0}, s{EH}, 8""")
        for i in range(4):
            g(f"v_lshl_add_u32 v{SO+i}, v{SO+i}, 16, s{X0}")
        g(f"""s_lshr_b32 s{X0}, s{SPM}, s{EB}
        s_bitcmp1_b32 s{X0}, 0
        s_cselect_b32 s{EFL}, 0, 16
        s_bitset1_b32 s{EFL}, {B_VALID}
        s_lshl_b32 s{X0}, s{EB}, 12
        s_or_b32 s{EFL}, s{EFL}, s{X0}
        s_mov_b32 s{X1}, s{X2}
        s_waitcnt lgkmcnt(0)""")
        emit_chunk(True)
        g("s_branch L_steal_loop")
    g("L_sched_end:")
    put_ctl_entry(CT_NULL | (1 << B_END))
    g(f"""s_add_u32 s{X0}, s{NFL}, 1
    v_mov_b32 v{T0}, s{X0}
    ds_write_b32 v{ZERO}, v{T0} offset:{L_CTL+C_TOTAL}
    s_waitcnt lgkmcnt(0)""")
    stamp_end(g, f"s{NSTEAL}", f"s{OWNM}")
    g("s_endpgm")


def reducer(g):
    o = g.opt
    LANE = 1
    A16, ZERO, PRA, T0, T1, T2, T3, OUTA, LA, UA = 2, 3, 4, 5, 6, 7, 8, 9, 10, 11
    CTL = 12
    OW = 16
    ML = 32
    GA = 48
    RM, RW, RO = 56, 58, 60
    XM, XW, XO = 64, 66, 68
    RB = 72
    META = 104
    WSRD, OSRD, DSRD = 32, 36, 40
    TAG, DONE, SHST, OWNST, GOT, X0, X1, X2, X3, STR = 44, 45, 46, 47, 48, 50, 51, 52, 53, 54
    MISS = 56
    TODO = 58
    SL = 60
    RET = 64
    RET2 = 65
    OWNS = 66
    SAVE = 68
    LATE = 70
    SPIN, NFB, ABS = 72, 73, 74

    g("L_red:")
    g(f"""v_lshlrev_b32 v{A16}, 4, v{LANE}
    v_mov_b32 v{ZERO}, 0
    s_memrealtime {sr(X0,2)}
    s_waitcnt lgkmcnt(0)""")
    srd(g, DSRD, P_DBG, 256)
    g(f"""s_or_b32 s{TAG}, s{X0}, 1
    v_mov_b32 v{T1}, s{TAG}
    v_mov_b32 v{T2}, 0
    s_mov_b64 exec, 1
    buffer_atomic_cmpswap {vr(T1,2)}, v{ZERO}, {sr(DSRD,4)}, 0 offen sc0
    s_mov_b64 exec, -1""")
    srd(g, WSRD, P_WS, WSB)
    srd(g, OSRD, P_OUT, 131072)
    g(f"""v_and_b32 v{PRA}, 3, v{LANE}
    v_lshlrev_b32 v{PRA}, 8, v{PRA}
    v_and_b32 v{T0}, 15, v{LANE}
    v_lshrrev_b32 v{T3}, 4, v{LANE}
    v_lshlrev_b32 v{T0}, 4, v{T0}
    v_lshl_add_u32 v{OUTA}, v{T3}, 2, v{T0}
    v_mov_b32 v{RM}, {NEG_BIG:#x}
    v_mov_b32 v{RM+1}, {NEG_BIG:#x}
    v_mov_b32 v{RW}, 0
    v_mov_b32 v{RW+1}, 0
    v_mov_b32 v{RO}, 0
    v_mov_b32 v{RO+1}, 0
    v_mov_b32 v{RO+2}, 0
    v_mov_b32 v{RO+3}, 0
    s_mov_b32 s{DONE}, 0
    s_mov_b32 s{SHST}, 0
    s_mov_b32 s{OWNST}, 0
    s_mov_b32 s{ABS}, 0
    s_mov_b32 s{SPIN}, 0
    s_mov_b32 s{NFB}, 0
    s_mov_b64 {sr(GOT,2)}, 0
    s_lshl_b32 s{OWNS}, s{S_B}, 4
    s_add_u32 s{OWNS}, s{OWNS}, s{S_H}
    s_barrier
    s_waitcnt vmcnt(0)
    v_readfirstlane_b32 s{X0}, v{T1}
    s_cmp_eq_u32 s{X0}, 0
    s_cselect_b32 s{TAG}, s{TAG}, s{X0}
    v_mov_b32 v{T0}, s{TAG}
    ds_write_b32 v{ZERO}, v{T0} offset:{L_CTL+C_NONCE}""")

    def merge4(stride):
        for w in range(4):
            g(f"ds_read_b128 {vr(ML+4*w,4)}, v{UA} offset:{1024+w*stride}")
        for w in range(4):
            g(f"ds_read_b128 {vr(OW+4*w,4)}, v{LA} offset:{w*stride}")
        g("s_waitcnt lgkmcnt(4)")
        for q in range(2):
            g(f"""v_max3_f32 v{T0+q}, v{ML+2*q}, v{ML+4+2*q}, v{ML+8+2*q}
            v_max_f32 v{T0+q}, v{T0+q}, v{ML+12+2*q}""")
        for w in range(4):
            for q in range(2):
                g(f"v_sub_f32 v{ML+4*w+2*q}, v{ML+4*w+2*q}, v{T0+q}")
        for w in range(4):
            for q in range(2):
                g(f"v_exp_f32 v{ML+4*w+2*q}, v{ML+4*w+2*q}")
        g("s_nop 0")
        for q in range(2):
            g(f"v_mul_f32 v{T2+q}, v{ML+2*q}, v{ML+2*q+1}")
        for w in range(1, 4):
            for q in range(2):
                g(f"v_fmac_f32 v{T2+q}, v{ML+4*w+2*q}, v{ML+4*w+2*q+1}")
        g("s_waitcnt lgkmcnt(0)")
        for r in range(4):
            d = GA + 4 * (r & 1) + (r >> 1)
            g(f"v_mul_f32 v{d}, v{ML+2*(r&1)}, v{OW+r}")
        for w in range(1, 4):
            for r in range(4):
                d = GA + 4 * (r & 1) + (r >> 1)
                g(f"v_fmac_f32 v{d}, v{ML+4*w+2*(r&1)}, v{OW+4*w+r}")
        g(f"""v_log_f32 v{GA+2}, v{T2}
        v_log_f32 v{GA+6}, v{T3}
        v_rcp_f32 v{T2}, v{T2}
        v_rcp_f32 v{T3}, v{T3}
        v_mov_b32 v{GA+3}, s{TAG}
        v_mov_b32 v{GA+7}, s{TAG}
        v_add_f32 v{GA+2}, v{GA+2}, v{T0}
        v_add_f32 v{GA+6}, v{GA+6}, v{T1}
        v_mul_f32 v{GA}, v{GA}, v{T2}
        v_mul_f32 v{GA+1}, v{GA+1}, v{T2}
        v_mul_f32 v{GA+4}, v{GA+4}, v{T3}
        v_mul_f32 v{GA+5}, v{GA+5}, v{T3}""")

    def fold(b):
        for q in range(2):
            g(f"v_max_f32 v{T0+q}, v{RM+q}, v{b+4*q+2}")
        for q in range(2):
            g(f"""v_sub_f32 v{T2+q}, v{RM+q}, v{T0+q}
            v_sub_f32 v{b+4*q+2}, v{b+4*q+2}, v{T0+q}""")
        for q in range(2):
            g(f"""v_exp_f32 v{T2+q}, v{T2+q}
            v_exp_f32 v{b+4*q+2}, v{b+4*q+2}""")
        for q in range(2):
            g(f"v_mov_b32 v{RM+q}, v{T0+q}")
        for q in range(2):
            g(f"""v_fma_f32 v{RW+q}, v{RW+q}, v{T2+q}, v{b+4*q+2}
            v_mul_f32 v{RO+2*q}, v{RO+2*q}, v{T2+q}
            v_mul_f32 v{RO+2*q+1}, v{RO+2*q+1}, v{T2+q}
            v_fmac_f32 v{RO+2*q}, v{b+4*q+2}, v{b+4*q}
            v_fmac_f32 v{RO+2*q+1}, v{b+4*q+2}, v{b+4*q+1}""")

    def delay():
        for _ in range(o["delay_pub"]):
            g("s_sleep 127")

    def store_rec(sreg_off):
        g(f"""buffer_store_dwordx4 {vr(GA,4)}, v{A16}, {sr(WSRD,4)}, s{sreg_off} offen sc1
        buffer_store_dwordx4 {vr(GA+4,4)}, v{A16}, {sr(WSRD,4)}, s{sreg_off} offen offset:1024 sc1""")

    rets = []

    def call_absorb():
        i = len(rets)
        rets.append(i)
        g(f"""s_mov_b32 s{RET}, {i}
        s_branch L_absorb
        L_absret{i}:""")

    rets2 = []

    def call_late():
        i = len(rets2)
        rets2.append(i)
        g(f"""s_mov_b32 s{RET2}, {i}
        s_branch L_late
        L_lateret{i}:""")

    def write_out():
        g(f"""v_rcp_f32 v{T0}, v{RW}
        v_rcp_f32 v{T1}, v{RW+1}
        s_lshl_b32 s{X0}, s{STR}, 9
        v_mul_f32 v{RO}, v{RO}, v{T0}
        v_mul_f32 v{RO+1}, v{RO+1}, v{T0}
        v_mul_f32 v{RO+2}, v{RO+2}, v{T1}
        v_mul_f32 v{RO+3}, v{RO+3}, v{T1}
        v_cvt_pk_bf16_f32 v{T0}, v{RO}, v{RO+1}
        v_cvt_pk_bf16_f32 v{T1}, v{RO+2}, v{RO+3}
        buffer_store_dword v{T0}, v{OUTA}, {sr(OSRD,4)}, s{X0} offen
        buffer_store_dword v{T1}, v{OUTA}, {sr(OSRD,4)}, s{X0} offen offset:256""")

    g(f"""L_rloop:
    ds_read_b32 v{T0}, v{PRA} offset:{L_PROG}
    ds_read_b128 {vr(CTL,4)}, v{ZERO} offset:{L_CTL}
    ds_read_b32 v{T1}, v{ZERO} offset:{L_CTL+C_HASSH}
    s_waitcnt lgkmcnt(0)
    v_bfe_u32 v{T2}, v{T0}, 8, 8
    v_cmp_ge_u32 vcc, s{DONE}, v{T2}
    s_cbranch_vccz L_r_flush
    s_cmp_lg_u32 s{SHST}, 0
    s_cbranch_scc1 L_r_nosh
    v_readfirstlane_b32 s{X0}, v{T1}
    s_cmp_eq_u32 s{X0}, 1
    s_cselect_b32 s{SHST}, 1, 0
    v_and_b32 v{T2}, 0x10000, v{T0}
    v_cmp_eq_u32 vcc, 0, v{T2}
    s_cbranch_vccz L_r_shared
    L_r_nosh:
    s_cmp_eq_u32 s{OWNST}, 1
    s_cbranch_scc1 L_r_retry
    s_cmp_lg_u32 s{ABS}, 0
    s_cbranch_scc1 L_r_noabs
    v_readfirstlane_b32 s{X0}, v{CTL+1}
    s_cmp_lg_u32 s{X0}, 0
    s_cbranch_scc1 L_r_early
    L_r_noabs:
    v_readfirstlane_b32 s{X0}, v{CTL+2}
    s_add_u32 s{X1}, s{DONE}, 1
    s_cmp_eq_u32 s{X0}, s{X1}
    s_cbranch_scc0 L_r_sleep
    s_cmp_lg_u32 s{SHST}, 0
    s_cbranch_scc1 L_red_done
    L_r_sleep:
    {nap(1)}
    s_branch L_rloop""")

    g(f"""L_r_early:
    s_mov_b32 s{ABS}, 1
    s_and_b32 s{MISS}, s{X0}, 0xffff
    s_mov_b32 s{MISS+1}, 0
    s_mov_b64 {sr(GOT,2)}, {sr(MISS,2)}
    s_mov_b32 s{STR}, s{OWNS}""")
    call_absorb()
    g(f"""s_andn2_b64 {sr(GOT,2)}, {sr(GOT,2)}, {sr(MISS,2)}
    s_branch L_rloop""")

    g(f"""L_r_shared:
    s_mov_b32 s{SHST}, 1
    s_mov_b32 s{X2}, 0
    v_add_u32 v{LA}, {L_SD}, v{A16}
    v_mov_b32 v{UA}, {L_SD}
    s_lshl_b32 s{X3}, s{S_H}, 6
    s_add_u32 s{X3}, s{X3}, s{S_B}
    s_lshl_b32 s{X3}, s{X3}, 11""")
    delay()
    g("L_r_shl:")
    merge4(16 * REC)
    store_rec(X3)
    g(f"""s_add_u32 s{X3}, s{X3}, {16*64*2048}
    v_add_u32 v{LA}, {REC}, v{LA}
    v_add_u32 v{UA}, {REC}, v{UA}
    s_add_u32 s{X2}, s{X2}, 1
    s_cmp_lt_u32 s{X2}, 16
    s_cbranch_scc1 L_r_shl
    s_waitcnt vmcnt(0)
    v_and_b32 v{T0}, 15, v{LANE}
    v_lshlrev_b32 v{T0}, {4+6+11}, v{T0}
    s_lshl_b32 s{X3}, s{S_H}, 17
    s_add_u32 s{X3}, s{X3}, {SLOT_MARK*2048}
    buffer_load_dword v{T1}, v{T0}, {sr(WSRD,4)}, s{X3} offen offset:12 sc1
    s_waitcnt vmcnt(0)
    v_cmp_eq_u32 vcc, s{TAG}, v{T1}
    s_and_b32 s{LATE}, vcc_lo, 0xffff
    L_r_shlate:
    s_cmp_eq_u32 s{LATE}, 0
    s_cbranch_scc1 L_rloop
    s_ff1_i32_b32 s{X0}, s{LATE}
    s_bitset0_b32 s{LATE}, s{X0}
    s_lshl_b32 s{X0}, s{X0}, 4
    s_add_u32 s{STR}, s{X0}, s{S_H}""")
    call_late()
    g("s_branch L_r_shlate")

    g(f"""L_r_flush:
    s_and_b32 s{X0}, s{DONE}, 3
    s_lshl_b32 s{X1}, s{X0}, 4
    v_mov_b32 v{T0}, s{X1}
    ds_read_b128 {vr(META,4)}, v{T0} offset:{L_CTL+C_META}
    s_mul_i32 s{X0}, s{X0}, {4*REC}
    s_add_u32 s{X0}, s{X0}, {L_PD}
    v_add_u32 v{LA}, s{X0}, v{A16}
    v_mov_b32 v{UA}, s{X0}""")
    merge4(REC)
    g(f"""s_add_u32 s{DONE}, s{DONE}, 1
    v_mov_b32 v{T0}, s{DONE}
    ds_write_b32 v{ZERO}, v{T0} offset:{L_CTL+C_RDONE}
    v_readfirstlane_b32 s{X0}, v{META+1}
    v_readfirstlane_b32 s{X1}, v{META}
    s_cmp_eq_u32 s{X0}, 0
    s_cbranch_scc1 L_r_own
    s_lshl_b32 s{X3}, s{X1}, 6
    s_add_u32 s{X3}, s{X3}, s{X0}
    s_lshl_b32 s{X3}, s{X3}, 11""")
    delay()
    store_rec(X3)
    g(f"""s_mov_b32 s{STR}, s{X1}
    s_lshl_b32 s{X3}, s{X1}, 17
    s_add_u32 s{X3}, s{X3}, {SLOT_MARK*2048}
    s_waitcnt vmcnt(0)
    buffer_load_dword v{T1}, v{ZERO}, {sr(WSRD,4)}, s{X3} offen offset:12 sc1
    s_waitcnt vmcnt(0)
    v_cmp_eq_u32 vcc, s{TAG}, v{T1}
    s_cbranch_vccz L_rloop""")
    call_late()
    g("s_branch L_rloop")

    g(f"""L_r_own:
    v_readfirstlane_b32 s{MISS}, v{META+2}
    v_readfirstlane_b32 s{MISS+1}, v{META+3}
    s_mov_b32 s{ABS}, 1
    s_mov_b32 s{OWNST}, 1
    s_andn2_b64 {sr(MISS,2)}, {sr(MISS,2)}, {sr(GOT,2)}""")
    fold(GA)
    g(f"""L_r_retry:
    s_mov_b32 s{STR}, s{OWNS}""")
    if not o["force_fallback"]:
        call_absorb()
        g(f"""s_cmp_eq_u64 {sr(MISS,2)}, 0
        s_cbranch_scc1 L_r_fin
        ds_read_b32 v{T0}, v{ZERO} offset:{L_CTL+C_TOTAL}
        s_add_u32 s{X1}, s{DONE}, 1
        s_waitcnt lgkmcnt(0)
        v_readfirstlane_b32 s{X0}, v{T0}
        s_cmp_eq_u32 s{X0}, s{X1}
        s_cbranch_scc0 L_r_sleep
        s_cmp_eq_u32 s{SHST}, 0
        s_cbranch_scc1 L_r_sleep
        s_add_u32 s{SPIN}, s{SPIN}, 1
        s_cmp_lt_u32 s{SPIN}, {o['spin']}
        s_cbranch_scc1 L_rloop""")
    g(f"""s_add_u32 s{NFB}, s{NFB}, 1
    v_log_f32 v{GA+2}, v{RW}
    v_log_f32 v{GA+6}, v{RW+1}
    v_rcp_f32 v{T2}, v{RW}
    v_rcp_f32 v{T3}, v{RW+1}
    v_mov_b32 v{GA+3}, s{TAG}
    v_mov_b32 v{GA+7}, s{TAG}
    v_add_f32 v{GA+2}, v{GA+2}, v{RM}
    v_add_f32 v{GA+6}, v{GA+6}, v{RM+1}
    v_mul_f32 v{GA}, v{RO}, v{T2}
    v_mul_f32 v{GA+1}, v{RO+1}, v{T2}
    v_mul_f32 v{GA+4}, v{RO+2}, v{T3}
    v_mul_f32 v{GA+5}, v{RO+3}, v{T3}
    s_lshl_b32 s{X3}, s{OWNS}, 17
    s_add_u32 s{X2}, s{X3}, {SLOT_OWN*2048}
    s_add_u32 s{X3}, s{X3}, {SLOT_MARK*2048}""")
    store_rec(X2)
    g(f"""v_mov_b32 v{META}, s{MISS}
    v_mov_b32 v{META+1}, s{MISS+1}
    v_mov_b32 v{META+2}, 0
    v_mov_b32 v{META+3}, s{TAG}
    s_waitcnt vmcnt(0)
    s_mov_b64 exec, 1
    buffer_store_dwordx4 {vr(META,4)}, v{ZERO}, {sr(WSRD,4)}, s{X3} offen sc1
    s_mov_b64 exec, -1
    s_waitcnt vmcnt(0)""")
    call_absorb()
    g(f"""s_mov_b32 s{OWNST}, 2
    s_cmp_eq_u64 {sr(MISS,2)}, 0
    s_cbranch_scc0 L_rloop
    L_r_fin:
    s_mov_b32 s{OWNST}, 2""")
    write_out()
    g("s_branch L_rloop")

    g(f"""L_late:
    s_mov_b64 {sr(SAVE,2)}, {sr(MISS,2)}""")
    for i in range(8):
        g(f"v_mov_b32 v{XM+i}, v{RM+i}")
    g(f"""s_lshl_b32 s{X3}, s{STR}, 17
    s_add_u32 s{X3}, s{X3}, {SLOT_MARK*2048}
    buffer_load_dwordx4 {vr(META,4)}, v{ZERO}, {sr(WSRD,4)}, s{X3} offen sc1
    v_mov_b32 v{RM}, {NEG_BIG:#x}
    v_mov_b32 v{RM+1}, {NEG_BIG:#x}""")
    for i in range(2, 8):
        g(f"v_mov_b32 v{RM+i}, 0")
    g(f"""s_waitcnt vmcnt(0)
    v_readfirstlane_b32 s{MISS}, v{META}
    v_readfirstlane_b32 s{MISS+1}, v{META+1}
    s_bitset1_b32 s{MISS+1}, {SLOT_OWN-32}""")
    call_absorb()
    g(f"""s_cmp_eq_u64 {sr(MISS,2)}, 0
    s_cbranch_scc0 L_late_out""")
    write_out()
    g(f"""L_late_out:
    s_mov_b64 {sr(MISS,2)}, {sr(SAVE,2)}""")
    for i in range(8):
        g(f"v_mov_b32 v{RM+i}, v{XM+i}")
    for i in rets2[:-1]:
        g(f"""s_cmp_eq_u32 s{RET2}, {i}
        s_cbranch_scc1 L_lateret{i}""")
    g(f"s_branch L_lateret{rets2[-1]}")

    g(f"""L_absorb:
    s_mov_b64 {sr(TODO,2)}, {sr(MISS,2)}
    L_abs_loop:
    s_cmp_eq_u64 {sr(TODO,2)}, 0
    s_cbranch_scc1 L_abs_done
    s_lshl_b32 s{X3}, s{STR}, 17""")
    for i in range(4):
        g(f"""s_ff1_i32_b64 s{SL+i}, {sr(TODO,2)}
        s_lshl_b32 s{X0}, s{SL+i}, 11
        s_add_u32 s{X0}, s{X0}, s{X3}
        s_cmp_lt_i32 s{SL+i}, 0
        s_cselect_b32 s{X0}, {OOB}, s{X0}
        s_max_i32 s{X1}, s{SL+i}, 0
        s_bitset0_b64 {sr(TODO,2)}, s{X1}
        buffer_load_dwordx4 {vr(RB+8*i,4)}, v{A16}, {sr(WSRD,4)}, s{X0} offen sc1
        buffer_load_dwordx4 {vr(RB+8*i+4,4)}, v{A16}, {sr(WSRD,4)}, s{X0} offen offset:1024 sc1""")
    for i in range(4):
        g(f"""s_waitcnt vmcnt({6-2*i})
        v_cmp_ne_u32 vcc, s{TAG}, v{RB+8*i+3}
        v_cmp_ne_u32 {sr(X0,2)}, s{TAG}, v{RB+8*i+7}
        s_or_b64 vcc, vcc, {sr(X0,2)}
        s_cbranch_scc1 L_abs_skip{i}
        s_bitset0_b64 {sr(MISS,2)}, s{SL+i}""")
        fold(RB + 8 * i)
        g(f"L_abs_skip{i}:")
    g("""s_branch L_abs_loop
    L_abs_done:""")
    for i in rets[:-1]:
        g(f"""s_cmp_eq_u32 s{RET}, {i}
        s_cbranch_scc1 L_absret{i}""")
    g(f"s_branch L_absret{rets[-1]}")

    g("L_red_done:")
    stamp_end(g, f"s{NFB}", f"s{SPIN}")
    g("s_endpgm")


def build(**opt):
    g = G(**opt)
    g.o.append(HEADER.rstrip("\n"))
    g.o.append(f"; @launch grid=(256,1,1) block=(384,1,1) lds={LDS_BYTES}")
    g.o.append('.amdgcn_target "amdgcn-amd-amdhsa--gfx950"')
    g.o.append(".text")
    g.o.append(f".globl {KN}")
    g.o.append(".p2align 8")
    g.o.append(f".type {KN},@function")
    g(f"{KN}:")
    if g.opt["stamp"]:
        g("s_memrealtime s[96:97]")
    g(f"""s_cmp_ge_u32 s2, 256
    s_cbranch_scc1 L_exit
    s_load_dwordx16 s[16:31], s[0:1], 0
    v_lshrrev_b32 v2, 6, v0
    v_and_b32 v1, 63, v0
    v_readfirstlane_b32 s{S_WAVE}, v2
    s_mov_b32 s{S_FUEL}, 0x20000""")
    if g.opt["mapping"] == "head":
        g(f"""s_and_b32 s{S_H}, s2, 15
        s_lshr_b32 s{S_B}, s2, 4""")
    else:
        g(f"""s_and_b32 s{S_B}, s2, 15
        s_lshr_b32 s{S_H}, s2, 4""")
    g(f"""s_cmp_eq_u32 s{S_WAVE}, 4
    s_cbranch_scc1 L_sched
    s_cmp_eq_u32 s{S_WAVE}, 5
    s_cbranch_scc1 L_red""")
    nv = streaming(g)
    scheduler(g)
    reducer(g)
    g("""L_exit:
    s_endpgm""")
    g.o.append('.section .rodata,"a"')
    g.o.append(".p2align 6")
    g.o.append(f".amdhsa_kernel {KN}")
    g.o.append(f"  .amdhsa_next_free_vgpr {nv}")
    g.o.append("  .amdhsa_next_free_sgpr 102")
    g.o.append(f"  .amdhsa_accum_offset {(nv + 3) // 4 * 4}")
    g.o.append("  .amdhsa_group_segment_fixed_size 0")
    g.o.append("  .amdhsa_kernarg_size 64")
    g.o.append("  .amdhsa_user_sgpr_count 2")
    g.o.append("  .amdhsa_user_sgpr_kernarg_segment_ptr 1")
    g.o.append("  .amdhsa_system_sgpr_workgroup_id_x 1")
    g.o.append(".end_amdhsa_kernel")
    return "\n".join(g.o) + "\n"


if __name__ == "__main__":
    out = sys.argv[1]
    opt = {}
    for a in sys.argv[2:]:
        k, v = a.split("=")
        opt[k] = int(v) if v.lstrip("-").isdigit() else v
    open(out, "w").write(build(**opt))
    print(out, "lds", LDS_BYTES)
```

```python
import sys, struct

KN = "standalone__paged_block_table_kv_radixattention__sampling_kernel"
KVB = 2176 * 65536
WSB = 570425344

HEADER = """; Kernarg layout for this problem (64 bytes, ptrs only, base s[0:1]):
"""


def f2u(x):
    return struct.unpack("<I", struct.pack("<f", x))[0]


L_K = 0
L_BT = 0x8000
L_Q = 0xC000
L_TAB = 0xE000
NTAB = 128
L_PROG = 0xF000
L_CTL = 0xF400
C_NONCE = 0
C_GO = 4
C_TOTAL = 8
C_RDONE = 12
C_HASSH = 16
C_META = 32
L_PD = 0xF500
REC = 1040
L_SD = L_PD + 16 * REC
LDS_BYTES = L_SD + 64 * REC

B_SH, B_NULL, B_PRE, B_POST, B_POSTSH, B_END, B_VALID = 5, 6, 7, 8, 9, 10, 11
FLAGS_ANY = (1 << B_POST) | (1 << B_POSTSH) | (1 << B_END)
CT_NULL = (1 << B_NULL) | (1 << B_VALID)
OOB = 0x80000000
WS_CNT = 256 * 64 * 1024
CNT_STRIDE = 4352
SLOT_OWN = 48
WS_MARK = 63 * 256 * 1024
NEG_BIG = f2u(-3.0e38)
C_SCALE = f2u(0.08838834764831845 * 1.4426950408889634)
MASKV = f2u(-1.0e9 / 0.08838834764831845)


class G:
    def __init__(self, **opt):
        self.o = []
        self.opt = dict(mapping="head", steal=1, share=1, theta=200, ch=2, lead=1, minrem=1, stamp=0,
                        spin=24, force_fallback=0, nt=1, delay_pub=0, nocomp=0, napx=1, nopub=0, noq=0, abl=0, stpol='sc1', ldpol='sc1', phi=160)
        self.opt.update(opt)
        self.uid = 0

    def __call__(self, s):
        for line in s.strip("\n").split("\n"):
            self.o.append("    " + line.strip() if not line.strip().endswith(":") else line.strip())

    def lab(self, base):
        self.uid += 1
        return f"L_{base}_{self.uid}"


S_FUEL = 9


NAPX = [1]


def nap(n):
    return f"""s_sleep {n*NAPX[0]}
    s_sub_u32 s{S_FUEL}, s{S_FUEL}, 1
    s_cbranch_scc1 L_exit"""


def vr(a, n=1):
    return f"v{a}" if n == 1 else f"v[{a}:{a+n-1}]"


def sr(a, n=1):
    return f"s{a}" if n == 1 else f"s[{a}:{a+n-1}]"


def srd(g, d, lo, nbytes):
    g(f"""s_mov_b32 s{d}, s{lo}
    s_mov_b32 s{d+1}, s{lo+1}
    s_mov_b32 s{d+2}, {nbytes}
    s_mov_b32 s{d+3}, 0x20000""")


P_Q, P_K, P_V, P_BT, P_CTX, P_OUT, P_DBG, P_WS = 16, 18, 20, 22, 24, 26, 28, 30
S_WAVE, S_B, S_H = 3, 4, 5
S_T0 = 96


def stamp_end(g, x0=None, x1=None):
    if not g.opt["stamp"]:
        return
    g(f"""s_memrealtime s[98:99]
    s_mov_b32 s92, s{P_WS}
    s_mov_b32 s93, s{P_WS+1}
    s_mov_b32 s94, {WSB}
    s_mov_b32 s95, 0x20000
    s_mul_i32 s90, s2, 6
    s_add_u32 s90, s90, s{S_WAVE}
    s_lshl_b32 s90, s90, 4
    s_add_u32 s90, s90, {WSB - (1 << 20)}
    s_waitcnt lgkmcnt(0)
    s_mov_b64 exec, 1
    v_mov_b32 v4, s96
    v_mov_b32 v5, s97
    v_mov_b32 v6, s98
    v_mov_b32 v7, s99
    v_mov_b32 v2, 0
    buffer_store_dwordx4 v[4:7], v2, s[92:95], s90 offen""")
    if x0 is not None:
        g(f"""v_mov_b32 v8, {x0}
        v_mov_b32 v9, 0
        v_mov_b32 v10, {x1}
        v_mov_b32 v11, 0
        s_add_u32 s90, s90, {1 << 16}
        buffer_store_dwordx4 v[8:11], v2, s[92:95], s90 offen""")


def streaming(g):
    nt = " nt" if g.opt["nt"] else ""
    LANE, COL, GG = 1, 2, 3
    KOFF, VOFF, KRD, MSK = 4, 8, 12, 16
    TOK, ENT, EC, ES, PROGA, QRD, PDA, SDA = 20, 21, 22, 23, 24, 25, 26, 27
    T0, T1, T2, T3, MN, AL = 28, 29, 30, 31, 32, 33
    MP, LP = 34, 35
    MS0, LS0, MS1, LS1 = 36, 37, 38, 39
    ACCP = 40
    S = 44
    PB = 52
    QO = 56
    QS = 72
    KF = 104
    AT = 120
    VR = 136
    ACCS = 168
    ROW = T3
    MN1, AL1 = 232, 233
    nv = 234
    KS, VS, BS, QSRD = 32, 36, 40, 44
    CT = 48
    SOFF, CN, PROG, SC, PLO, PHI, MV, LK, SP = 50, 51, 52, 53, 54, 55, 56, 57, 58
    X0, X1, X2, X3, X4 = 60, 61, 62, 63, 64
    CTXR = 66

    def issue(p):
        g(f"s_add_u32 m0, s{LK}, {p*4096}")
        g("s_nop 0")
        for r in range(4):
            g(f"buffer_load_dwordx4 v{KOFF+r}, {sr(KS,4)}, s{SOFF} offen offset:{r*1024}{nt} lds")
        for r in range(4):
            g(f"buffer_load_dwordx4 {vr(VR+p*16+r*4,4)}, v{VOFF+r}, {sr(VS,4)}, s{SOFF} offen{nt}")

    g("L_stream:")
    g(f"""v_and_b32 v{COL}, 15, v{LANE}
    v_lshrrev_b32 v{GG}, 4, v{LANE}
    v_lshlrev_b32 v{T0}, 4, v{LANE}
    v_and_b32 v{T1}, 1, v{LANE}
    v_lshlrev_b32 v{T1}, 8, v{T1}
    v_lshl_add_u32 v{QRD}, v{GG}, 4, v{T1}
    s_lshl_b32 s{X0}, s{S_B}, 10
    s_lshl2_add_u32 s{X0}, s{S_WAVE}, s{X0}
    s_lshl_b32 s{X1}, s{S_B}, 2
    s_lshl_b32 s{X2}, s{S_B}, 13
    s_lshl_b32 s{X3}, s{S_H}, 9
    s_add_u32 s{X2}, s{X2}, s{X3}
    s_waitcnt lgkmcnt(0)
    s_load_dword s{CTXR}, {sr(P_CTX,2)}, s{X1}""")
    srd(g, BS, P_BT, 16384)
    g(f"buffer_load_dword v{ROW}, v{T0}, {sr(BS,4)}, s{X0} offen")
    srd(g, QSRD, P_Q, 131072)
    for j in range(4):
        g(f"buffer_load_dwordx4 {vr(QO+4*j,4)}, v{QRD}, {sr(QSRD,4)}, s{X2} offen offset:{64*j}")
    g("s_barrier")
    srd(g, KS, P_K, KVB)
    srd(g, VS, P_V, KVB)
    for r in range(4):
        g(f"""v_add_u32 v{T1}, {4*r}, v{GG}
        v_xor_b32 v{T2}, v{T1}, v{COL}
        v_lshlrev_b32 v{T2}, 4, v{T2}
        v_lshl_add_u32 v{KOFF+r}, v{T1}, 12, v{T2}""")
        if r:
            g(f"v_subrev_u32 v{KOFF+r}, {r*1024}, v{KOFF+r}")
    g(f"""v_lshlrev_b32 v{T1}, 14, v{GG}
    v_lshl_add_u32 v{VOFF}, v{COL}, 4, v{T1}
    v_add_u32 v{VOFF+1}, 0x1000, v{VOFF}
    v_add_u32 v{VOFF+2}, 0x2000, v{VOFF}
    v_add_u32 v{VOFF+3}, 0x3000, v{VOFF}
    s_lshl_b32 s{LK}, s{S_WAVE}, 13
    s_lshl_b32 s{X3}, s{S_H}, 8
    s_waitcnt lgkmcnt(0)""")
    g(f"""s_max_i32 s{X0}, s{CTXR}, 0
    s_min_i32 s{X0}, s{X0}, 4096
    s_add_u32 s{X1}, s{X0}, 63
    s_lshr_b32 s{X1}, s{X1}, 6
    s_cmp_eq_u32 s{X1}, 0
    s_cselect_b32 s{X1}, 64, s{X1}
    s_cselect_b32 s{X4}, 1, 0
    s_lshl_b32 s{X2}, s{S_WAVE}, 4
    s_sub_i32 s{X0}, s{X0}, s{X2}
    s_waitcnt vmcnt(4)""")
    for o in range(2):
        g(f"""s_sub_i32 s{X2}, s{X1}, {1+o}
        s_max_i32 s{CN}, s{X2}, 0
        v_readlane_b32 s{SOFF}, v{ROW}, s{CN}
        s_lshl_b32 s{CN}, s{CN}, 6
        s_sub_i32 s{CN}, s{X0}, s{CN}
        s_max_i32 s{CN}, s{CN}, 0
        s_min_i32 s{CN}, s{CN}, 16
        s_lshl_b32 s{SOFF}, s{SOFF}, 16
        s_add_u32 s{SOFF}, s{SOFF}, s{X3}
        s_or_b32 s{SP}, s{CN}, s{X4}
        s_cmp_lt_i32 s{X2}, 0
        s_cselect_b32 s{SP}, 0, s{SP}
        s_cmp_eq_u32 s{SP}, 0
        s_cselect_b32 s{SOFF}, {OOB}, s{SOFF}
        s_cselect_b32 s{CT+o}, {CT_NULL}, s{CN}""")
        issue(o)
        if o == 0:
            g(f"""v_lshrrev_b32 v{T1}, 1, v{COL}
            v_lshl_add_u32 v{T1}, v{T1}, 13, v{QRD}
            s_lshl_b32 s{CN}, s{S_H}, 9
            s_add_u32 s{SP}, s{CN}, 0x10000""")
            for u in range(2):
                for j in range(4):
                    if g.opt["noq"]:
                        continue
                    g(f"buffer_load_dwordx4 {vr(QS+16*u+4*j,4)}, v{T1}, {sr(QSRD,4)}, s{CN if u == 0 else SP} offen offset:{64*j}")
    for j in range(4):
        g(f"""v_add_u32 v{T1}, {4*j}, v{GG}
        v_xor_b32 v{T1}, v{T1}, v{COL}
        v_lshlrev_b32 v{T1}, 4, v{T1}
        v_lshl_add_u32 v{T1}, v{COL}, 8, v{T1}
        v_add_u32 v{KRD+j}, s{LK}, v{T1}""")
    g(f"""v_mov_b32 v{T1}, 0xffff
    v_and_b32 v{T2}, 2, v{COL}
    v_lshlrev_b32 v{T2}, 3, v{T2}
    v_lshlrev_b32 v{T1}, v{T2}, v{T1}
    v_lshrrev_b32 v{T2}, 2, v{COL}""")
    for j in range(4):
        g(f"""v_cmp_eq_u32 vcc, {j}, v{T2}
        s_nop 1
        v_cndmask_b32 v{MSK+j}, 0, v{T1}, vcc""")
    g(f"""v_lshlrev_b32 v{TOK}, 2, v{GG}
    s_lshl_b32 s{X0}, s{S_WAVE}, 2
    s_add_u32 s{X0}, s{X0}, {L_TAB}
    v_mov_b32 v{ENT}, s{X0}
    s_lshl_b32 s{X0}, s{S_WAVE}, 8
    s_add_u32 s{X0}, s{X0}, {L_PROG}
    v_lshl_add_u32 v{PROGA}, v{LANE}, 2, s{X0}
    v_add_u32 v{QRD}, {L_Q}, v{QRD}
    s_mul_i32 s{X0}, s{S_WAVE}, {REC}
    s_add_u32 s{X0}, s{X0}, {L_PD}
    v_lshl_add_u32 v{PDA}, v{LANE}, 4, s{X0}
    s_mul_i32 s{X0}, s{S_WAVE}, {16*REC}
    s_add_u32 s{X0}, s{X0}, {L_SD}
    v_lshrrev_b32 v{T1}, 1, v{COL}
    v_mul_u32_u24 v{T1}, {REC}, v{T1}
    v_lshl_add_u32 v{T1}, v{GG}, 6, v{T1}
    v_and_b32 v{T2}, 1, v{COL}
    v_lshl_add_u32 v{T1}, v{T2}, 2, v{T1}
    v_add_u32 v{SDA}, s{X0}, v{T1}
    s_mov_b32 s{PROG}, 0
    s_mov_b32 s74, 0
    s_mov_b32 s75, 0
    s_mov_b32 s76, 0
    s_mov_b32 s79, 0
    s_mov_b32 s{SC}, {C_SCALE:#x}
    s_mov_b32 s{PLO}, 0x05040100
    s_mov_b32 s{PHI}, 0x07060302
    s_mov_b32 s{MV}, {MASKV:#x}
    v_mov_b32 v{MP}, {NEG_BIG:#x}
    v_mov_b32 v{LP}, 0
    v_mov_b32 v{MS0}, {NEG_BIG:#x}
    v_mov_b32 v{MS1}, {NEG_BIG:#x}
    v_mov_b32 v{LS0}, 0
    v_mov_b32 v{LS1}, 0""")
    for i in range(4):
        g(f"v_mov_b32 v{ACCP+i}, 0")
    for i in range(64):
        g(f"v_mov_b32 v{ACCS+i}, 0")

    def xmax(t, u):
        g(f"""v_mov_b32 v{u}, v{t}
        s_nop 1
        v_permlane32_swap_b32 v{t}, v{u}
        v_max_f32 v{t}, v{t}, v{u}
        v_mov_b32 v{u}, v{t}
        s_nop 1
        v_permlane16_swap_b32 v{t}, v{u}
        v_max_f32 v{t}, v{t}, v{u}""")

    def xsum(t, u):
        g(f"""v_mov_b32 v{u}, v{t}
        s_nop 1
        v_permlane32_swap_b32 v{t}, v{u}
        v_add_f32 v{t}, v{t}, v{u}
        v_mov_b32 v{u}, v{t}
        s_nop 1
        v_permlane16_swap_b32 v{t}, v{u}
        v_add_f32 v{t}, v{t}, v{u}""")

    for p in range(2):
        c = CT + p
        V = VR + 16 * p
        g(f"L_it{p}:")
        g(f"""ds_read_b32 v{EC}, v{ENT} offset:16
        ds_read_b32 v{ES}, v{ENT}
        s_mov_b32 s{SP}, {p}""")
        if g.opt["stamp"] == 2:
            g("""s_memtime s[70:71]
            s_waitcnt lgkmcnt(0)""")
        g("s_waitcnt vmcnt(8)")
        if g.opt["stamp"] == 2:
            g("""s_memtime s[72:73]
            s_waitcnt lgkmcnt(0)
            s_sub_u32 s70, s72, s70
            s_add_u32 s74, s74, s70
            s_cmp_eq_u32 s76, 0
            s_cbranch_scc0 L_nf%d
            s_memrealtime s[76:77]
            s_waitcnt lgkmcnt(0)
            s_sub_u32 s76, s76, s96
            s_mov_b32 s78, s72
            L_nf%d:""" % (p, p))
        g(f"""s_bitcmp1_b32 s{c}, {B_NULL}
        s_cbranch_scc1 L_post{p}""")
        if g.opt["nocomp"]:
            g(f"s_branch L_post{p}")
        for j in range(4):
            g(f"ds_read_b128 {vr(KF+4*j,4)}, v{KRD+j} offset:{p*4096}")
        g(f"""s_bitcmp1_b32 s{c}, {B_SH}
        s_cbranch_scc1 L_sh{p}
        s_bitcmp1_b32 s{c}, {B_PRE}
        s_cbranch_scc1 L_pre{p}
        L_priv{p}:""")
        for j in range(4):
            g(f"s_waitcnt lgkmcnt({3-j})")
            g(f"v_mfma_f32_16x16x32_bf16 {vr(S,4)}, {vr(KF+4*j,4)}, {vr(QO+4*j,4)}, {'0' if j == 0 else vr(S,4)}")
        g(f"""s_and_b32 s{X0}, s{c}, 31
        s_cmp_eq_u32 s{X0}, 16
        s_nop 5
        s_cbranch_scc0 L_mask{p}
        L_nomask{p}:
        v_max3_f32 v{T0}, v{S}, v{S+1}, v{S+2}
        v_max_f32 v{T0}, v{T0}, v{S+3}""")
        xmax(T0, T1)
        g(f"""v_mul_f32 v{T0}, s{SC}, v{T0}
        v_max_f32 v{MN}, v{MP}, v{T0}
        v_sub_f32 v{AL}, v{MP}, v{MN}""")
        for r in range(4):
            g(f"v_fma_f32 v{S+r}, v{S+r}, s{SC}, -v{MN}")
        g(f"v_exp_f32 v{AL}, v{AL}")
        for r in range(4):
            g(f"v_exp_f32 v{S+r}, v{S+r}")
        g(f"v_mov_b32 v{MP}, v{MN}")
        for r in range(4):
            q = r & 1
            g(f"v_mul_f32_dpp v{ACCP+r}, v{AL}, v{ACCP+r} quad_perm:[{q},{q},{q},{q}] row_mask:0xf bank_mask:0xf")
        for r in range(4):
            g(f"v_cvt_pk_bf16_f32 v{T0+r}, v{S+r}, v{S+r}")
        for r in range(4):
            for j in range(4):
                g(f"v_and_b32 v{AT+4*r+j}, v{T0+r}, v{MSK+j}")
        g(f"""v_fma_f32 v{LP}, v{LP}, v{AL}, v{S}
        v_add_f32 v{T0}, v{S+1}, v{S+2}""")
        for r in range(4):
            g(f"v_mfma_f32_16x16x32_bf16 {vr(ACCP,4)}, {vr(AT+4*r,4)}, {vr(V+4*r,4)}, {vr(ACCP,4)}")
        g(f"""v_add_f32 v{T0}, v{T0}, v{S+3}
        v_add_f32 v{LP}, v{LP}, v{T0}
        L_post{p}:
        s_and_b32 s{X0}, s{c}, {FLAGS_ANY}
        s_mov_b32 s{X1}, s{c}
        s_cbranch_scc1 L_flags
        L_next{p}:
        s_waitcnt lgkmcnt(0)
        v_readfirstlane_b32 s{CN}, v{EC}
        v_readfirstlane_b32 s{SOFF}, v{ES}
        s_cmp_eq_u32 s{CN}, 0
        s_cbranch_scc1 L_retry{p}
        L_got{p}:
        s_add_u32 s{PROG}, s{PROG}, 1
        v_add_u32 v{ENT}, 32, v{ENT}
        v_mov_b32 v{T0}, s{PROG}
        ds_write_b32 v{PROGA}, v{T0}
        L_issue{p}:
        s_mov_b32 s{c}, s{CN}""")
        if g.opt["stamp"] == 2:
            g("""s_memtime s[80:81]
            s_waitcnt lgkmcnt(0)
            s_sub_u32 s80, s80, s72
            s_add_u32 s79, s79, s80""")
        issue(p)
        if p == 1:
            g("s_branch L_it0")

    for p in range(2):
        c = CT + p
        V = VR + 16 * p
        g(f"""L_retry{p}:
        ds_read_b32 v{EC}, v{ENT} offset:16
        ds_read_b32 v{ES}, v{ENT}
        s_waitcnt lgkmcnt(0)
        v_readfirstlane_b32 s{CN}, v{EC}
        v_readfirstlane_b32 s{SOFF}, v{ES}
        s_cmp_lg_u32 s{CN}, 0
        s_cbranch_scc1 L_got{p}
        s_nop 2
        s_add_u32 s75, s75, 1
        s_mov_b32 s{SOFF}, {OOB}
        s_mov_b32 s{CN}, {CT_NULL}
        s_cmp_lg_u32 s{CT+1-p}, {CT_NULL}
        s_cbranch_scc1 L_issue{p}
        {nap(2)}
        s_branch L_issue{p}
        L_mask{p}:
        v_mov_b32 v{T1}, s{MV}""")
        for r in range(4):
            g(f"""v_add_u32 v{T0}, {r}, v{TOK}
            v_cmp_gt_u32 vcc, s{X0}, v{T0}
            s_nop 1
            v_cndmask_b32 v{S+r}, v{T1}, v{S+r}, vcc""")
        g(f"s_branch L_nomask{p}")
        g(f"""L_pre{p}:
        s_bfe_u32 s{X0}, s{c}, 0x4000c
        s_lshl_b32 s{X0}, s{X0}, 9
        v_add_u32 v{T0}, s{X0}, v{QRD}""")
        for j in range(4):
            g(f"ds_read_b128 {vr(QO+4*j,4)}, v{T0} offset:{64*j}")
        g(f"""v_mov_b32 v{MP}, {NEG_BIG:#x}
        v_mov_b32 v{LP}, 0""")
        for i in range(4):
            g(f"v_mov_b32 v{ACCP+i}, 0")
        g(f"""s_waitcnt lgkmcnt(0)
        s_branch L_priv{p}""")
        g(f"L_sh{p}:")
        for e in range(8):
            m, hb = e >> 1, e & 1
            sel = PHI if hb else PLO
            g(f"v_perm_b32 v{AT+2*e}, v{V+4+m}, v{V+m}, s{sel}")
            g(f"v_perm_b32 v{AT+2*e+1}, v{V+12+m}, v{V+8+m}, s{sel}")
        if p == 0:
            g("s_branch L_shc")
    g("L_shc:")
    for j in range(4):
        g(f"s_waitcnt lgkmcnt({3-j})")
        for u in range(2):
            g(f"v_mfma_f32_16x16x32_bf16 {vr(S+4*u,4)}, {vr(KF+4*j,4)}, {vr(QS+16*u+4*j,4)}, {'0' if j == 0 else vr(S+4*u,4)}")
    g("s_nop 7")
    g(f"""v_max3_f32 v{T0}, v{S}, v{S+1}, v{S+2}
    v_max3_f32 v{T2}, v{S+4}, v{S+5}, v{S+6}
    v_max_f32 v{T0}, v{T0}, v{S+3}
    v_max_f32 v{T2}, v{T2}, v{S+7}
    v_mov_b32 v{T1}, v{T0}
    v_mov_b32 v{T3}, v{T2}
    s_nop 0
    v_permlane32_swap_b32 v{T0}, v{T1}
    v_permlane32_swap_b32 v{T2}, v{T3}
    v_max_f32 v{T0}, v{T0}, v{T1}
    v_max_f32 v{T2}, v{T2}, v{T3}
    v_mov_b32 v{T1}, v{T0}
    v_mov_b32 v{T3}, v{T2}
    s_nop 0
    v_permlane16_swap_b32 v{T0}, v{T1}
    v_permlane16_swap_b32 v{T2}, v{T3}
    v_max_f32 v{T0}, v{T0}, v{T1}
    v_max_f32 v{T2}, v{T2}, v{T3}
    v_mul_f32 v{T0}, s{SC}, v{T0}
    v_mul_f32 v{T2}, s{SC}, v{T2}
    v_max_f32 v{MN}, v{MS0}, v{T0}
    v_max_f32 v{MN1}, v{MS1}, v{T2}
    v_sub_f32 v{AL}, v{MS0}, v{MN}
    v_sub_f32 v{AL1}, v{MS1}, v{MN1}
    v_min_f32 v{T0}, v{AL}, v{AL1}
    v_cmp_gt_f32 vcc, 0, v{T0}""")
    for r in range(4):
        g(f"v_fma_f32 v{S+r}, v{S+r}, s{SC}, -v{MN}")
        g(f"v_fma_f32 v{S+4+r}, v{S+4+r}, s{SC}, -v{MN1}")
    g(f"""v_exp_f32 v{AL}, v{AL}
    v_exp_f32 v{AL1}, v{AL1}""")
    for r in range(8):
        g(f"v_exp_f32 v{S+r}, v{S+r}")
    g(f"""v_mov_b32 v{MS0}, v{MN}
    v_mov_b32 v{MS1}, v{MN1}
    s_cbranch_vccz L_shnr""")
    for i in range(32):
        g(f"v_mul_f32 v{ACCS+i}, v{AL}, v{ACCS+i}")
    for i in range(32):
        g(f"v_mul_f32 v{ACCS+32+i}, v{AL1}, v{ACCS+32+i}")
    g(f"""L_shnr:
    v_cvt_pk_bf16_f32 v{PB}, v{S}, v{S+1}
    v_cvt_pk_bf16_f32 v{PB+1}, v{S+2}, v{S+3}
    v_cvt_pk_bf16_f32 v{PB+2}, v{S+4}, v{S+5}
    v_cvt_pk_bf16_f32 v{PB+3}, v{S+6}, v{S+7}
    v_fma_f32 v{LS0}, v{LS0}, v{AL}, v{S}
    v_fma_f32 v{LS1}, v{LS1}, v{AL1}, v{S+4}""")
    k = 0
    extra = [f"v_add_f32 v{T0}, v{S+1}, v{S+2}", f"v_add_f32 v{T2}, v{S+5}, v{S+6}",
             f"v_add_f32 v{T0}, v{T0}, v{S+3}", f"v_add_f32 v{T2}, v{T2}, v{S+7}",
             f"v_add_f32 v{LS0}, v{LS0}, v{T0}", f"v_add_f32 v{LS1}, v{LS1}, v{T2}"]
    for u in range(2):
        for e in range(8):
            a = ACCS + 32 * u + 4 * e
            g(f"v_mfma_f32_16x16x16_bf16 {vr(a,4)}, {vr(AT+2*e,2)}, {vr(PB+2*u,2)}, {vr(a,4)}")
            if k < len(extra):
                g(extra[k]); k += 1
    g(f"""s_cmp_eq_u32 s{SP}, 0
    s_cbranch_scc1 L_post0
    s_branch L_post1""")

    g(f"""L_flags:
    s_bitcmp1_b32 s{X1}, {B_POSTSH}
    s_cbranch_scc0 L_fl_priv""")
    xsum(LS0, T0)
    xsum(LS1, T0)
    for u in range(2):
        for e in range(8):
            for r in range(4):
                off = u * 8 * REC + r * 16 + (e >> 1) * 256 + (e & 1) * 8
                g(f"ds_write_b32 v{SDA}, v{ACCS+32*u+4*e+r} offset:{off}")
    g(f"""v_and_b32 v{T0}, 1, v{COL}
    v_lshl_add_u32 v{T0}, v{T0}, 2, v{SDA}
    s_mov_b64 exec, 0xffff
    ds_write_b64 v{T0}, {vr(MS0,2)} offset:1024
    ds_write_b64 v{T0}, {vr(MS1,2)} offset:{1024+8*REC}
    s_mov_b64 exec, -1
    s_bitset1_b32 s{PROG}, 16
    v_mov_b32 v{T0}, s{PROG}
    s_waitcnt lgkmcnt(0)
    ds_write_b32 v{PROGA}, v{T0}
    L_fl_priv:
    s_bitcmp1_b32 s{X1}, {B_POST}
    s_cbranch_scc0 L_fl_end""")
    xsum(LP, T0)
    g(f"""s_bfe_u32 s{X0}, s{PROG}, 0x20008
    s_mul_i32 s{X0}, s{X0}, {4*REC}
    v_add_u32 v{T0}, s{X0}, v{PDA}
    ds_write_b128 v{T0}, {vr(ACCP,4)}
    v_lshlrev_b32 v{T1}, 3, v{LANE}
    v_sub_u32 v{T0}, v{T0}, v{T1}
    s_mov_b64 exec, 3
    ds_write_b64 v{T0}, {vr(MP,2)} offset:1024
    s_mov_b64 exec, -1
    s_add_u32 s{PROG}, s{PROG}, 0x100
    v_mov_b32 v{T0}, s{PROG}
    s_waitcnt lgkmcnt(0)
    ds_write_b32 v{PROGA}, v{T0}
    L_fl_end:
    s_bitcmp1_b32 s{X1}, {B_END}
    s_cbranch_scc1 L_stream_done
    s_cmp_eq_u32 s{SP}, 0
    s_cbranch_scc1 L_next0
    s_branch L_next1
    L_stream_done:
    s_waitcnt lgkmcnt(0)""")
    if g.opt["stamp"] == 2:
        g("""s_sub_u32 s72, s72, s78
        s_lshr_b32 s72, s72, 4
        s_lshr_b32 s74, s74, 4
        s_lshl_b32 s72, s72, 16
        s_or_b32 s74, s74, s72
        s_lshl_b32 s76, s76, 16
        s_lshr_b32 s75, s79, 4
        s_or_b32 s75, s75, s76""")
        stamp_end(g, "s74", "s75")
    else:
        stamp_end(g)
    g("s_endpgm")
    return nv


def scheduler(g):
    o = g.opt
    D = 2
    LANE = 1
    A16, T0, T1, T2, T3, VG, VSUM, VX, VCAP, VLO, VHI, VF, VNCH, VSP = 2, 3, 4, 5, 6, 7, 8, 9, 10, 11, 12, 13, 14, 15
    SO = 16
    CTV = 20
    POS, PRA, ZERO = 24, 25, 26
    R0 = 32
    BS, QSRD, WSRD = 32, 36, 40
    CX = 64
    GMIN, CMIN, SG, GSUM, X0, X1, X2, X3, X4, X5 = 44, 45, 46, 47, 48, 49, 50, 51, 52, 53
    M0_, M1_ = 54, 56
    KPUB, MYG, MYF, MYN, TAG, GAM, NFL, SHM, SPM = 58, 59, 60, 61, 62, 63, 80, 81, 82
    OWNM = 83
    CB = 84
    TRY, EB, EH, EO0, EO1, EFL = 86, 87, 88, 89, 6, 7
    NSTEAL = 8

    g("L_sched:")
    g(f"""v_lshlrev_b32 v{A16}, 4, v{LANE}
    v_mov_b32 v{ZERO}, 0
    v_mov_b32 v{T0}, 0
    v_mov_b32 v{T1}, 0
    v_mov_b32 v{T2}, 0
    v_mov_b32 v{T3}, 0
    v_mov_b32 v{SO}, 0
    v_mov_b32 v{SO+1}, 0
    v_mov_b32 v{SO+2}, 0
    v_mov_b32 v{SO+3}, 0
    s_mov_b32 m0, {L_BT}""")
    for i in range((L_CTL + 256 - L_TAB) // 1024):
        g(f"ds_write_b128 v{A16}, {vr(SO,4)} offset:{L_TAB+i*1024}")
    g(f"""v_lshlrev_b32 v{PRA}, 2, v{LANE}
    ds_write_b32 v{PRA}, v{ZERO} offset:{L_CTL}
    s_waitcnt lgkmcnt(0)
    s_load_dwordx16 {sr(CX,16)}, {sr(P_CTX,2)}, 0""")
    srd(g, BS, P_BT, 16384)
    for q in range(4):
        g(f"s_mov_b32 s{X0}, {q*4096}")
        if q:
            g(f"s_mov_b32 m0, {L_BT+q*4096}")
            g("s_nop 0")
        for r in range(4):
            g(f"buffer_load_dwordx4 v{A16}, {sr(BS,4)}, s{X0} offen offset:{r*1024} lds")
    g("s_barrier")
    srd(g, QSRD, P_Q, 131072)
    srd(g, WSRD, P_WS, WSB)
    g(f"""s_mov_b32 s{GMIN}, 64
    s_mov_b32 s{CMIN}, 4096
    s_mov_b32 s{GSUM}, 0
    s_mov_b32 s{SPM}, 0
    v_mov_b32 v{VG}, 64
    s_waitcnt lgkmcnt(0)""")
    for b in range(16):
        c = CX + b
        g(f"""s_max_i32 s{c}, s{c}, 0
        s_min_i32 s{c}, s{c}, 4096
        s_min_u32 s{CMIN}, s{CMIN}, s{c}
        s_add_u32 s{c}, s{c}, 63
        s_lshr_b32 s{c}, s{c}, 6
        s_cselect_b32 s{X0}, 0, {1 << b}
        s_cselect_b32 s{c}, s{c}, 64
        s_or_b32 s{SPM}, s{SPM}, s{X0}
        s_min_u32 s{GMIN}, s{GMIN}, s{c}
        s_add_u32 s{GSUM}, s{GSUM}, s{c}
        v_writelane_b32 v{VG}, s{c}, {b}""")
    g(f"""v_lshl_add_u32 v{VX}, v{VG}, 4, v{LANE}
    v_mov_b32 v{VSUM}, 0""")
    for b in range(16):
        g(f"""s_lshl_b32 s{X0}, s{CX+b}, 4
        s_add_u32 s{X0}, s{X0}, {b}
        v_cmp_lt_u32 vcc, s{X0}, v{VX}
        s_nop 1
        v_addc_co_u32 v{VSUM}, vcc, 0, v{VSUM}, vcc""")
    g(f"""s_lshr_b32 s{CMIN}, s{CMIN}, 6
    s_sub_i32 s{X0}, s{GMIN}, {D}
    s_max_i32 s{X0}, s{X0}, 0
    s_min_u32 s{CMIN}, s{CMIN}, s{X0}
    s_sub_u32 s{GAM}, s{S_H}, s{S_B}
    s_and_b32 s{GAM}, s{GAM}, 15
    s_waitcnt vmcnt(0)""")
    for b in range(16):
        g(f"ds_read_b128 {vr(R0+4*b,4)}, v{A16} offset:{L_BT+1024*b}")
    g(f"""s_lshl_b32 s{X0}, s{S_B}, 10
    v_add_u32 v{T0}, s{X0}, v{A16}
    s_mov_b64 {sr(M0_,2)}, 0
    s_waitcnt lgkmcnt(0)
    ds_read_b128 {vr(SO,4)}, v{T0} offset:{L_BT}""")
    for b in range(1, 16):
        for hf in range(2):
            g(f"v_cmp_ne_u64 vcc, {vr(R0+2*hf,2)}, {vr(R0+4*b+2*hf,2)}")
            g(f"s_or_b64 {sr(M0_,2)}, {sr(M0_,2)}, vcc")
    g(f"""s_ff1_i32_b64 s{SG}, {sr(M0_,2)}
    s_min_u32 s{SG}, s{SG}, s{CMIN}""")
    if not o["share"]:
        g(f"s_mov_b32 s{SG}, 0")
    g(f"""s_mul_i32 s{X1}, s{SG}, 15
    s_sub_u32 s{X1}, s{GSUM}, s{X1}
    s_mul_i32 s{X0}, s{X1}, {o['phi']}
    s_lshr_b32 s{X0}, s{X0}, 12
    s_max_u32 s{X0}, s{X0}, 1
    v_add_u32 v{T0}, 1, v{LANE}
    v_mul_u32_u24 v{T1}, s{X0}, v{T0}
    v_cmp_le_u32 vcc, s{SG}, v{T1}
    s_ff1_i32_b64 s{X0}, vcc
    s_add_u32 s{X0}, s{X0}, 1
    s_min_u32 s{X0}, s{X0}, 16
    v_mul_u32_u24 v{T1}, s{X0}, v{T0}
    v_cmp_le_u32 vcc, s{SG}, v{T1}
    s_ff1_i32_b64 s{X0}, vcc
    s_add_u32 s{X0}, s{X0}, 1
    v_mul_u32_u24 v{VLO}, s{X0}, v{VSUM}
    v_add_u32 v{VHI}, s{X0}, v{VLO}
    v_min_u32 v{VLO}, s{SG}, v{VLO}
    v_min_u32 v{VHI}, s{SG}, v{VHI}
    v_sub_u32 v{VCAP}, v{VHI}, v{VLO}
    v_cmp_lt_u32 vcc, 0, v{VCAP}
    s_and_b32 s{SHM}, vcc_lo, 0xffff""")
    g(f"""s_mul_i32 s{X1}, s{X1}, {o['theta']}
    s_lshr_b32 s{X1}, s{X1}, 12
    v_subrev_u32 v{T0}, s{SG}, v{VG}
    v_sub_u32 v{VF}, s{X1}, v{VCAP}
    v_max_i32 v{VF}, {D}, v{VF}
    v_subrev_u32 v{T1}, {32*o['ch']}, v{T0}
    v_max_i32 v{VF}, v{VF}, v{T1}
    v_min_i32 v{VF}, v{VF}, v{T0}""")
    if not o["steal"]:
        g(f"v_mov_b32 v{VF}, v{T0}")
    chs = {1: 0, 2: 1, 4: 2}[o["ch"]]
    g(f"""v_sub_u32 v{VNCH}, v{T0}, v{VF}
    v_add_u32 v{VNCH}, {o['ch']-1}, v{VNCH}
    v_lshrrev_b32 v{VNCH}, {chs}, v{VNCH}
    s_nop 0
    v_readlane_b32 s{MYG}, v{VG}, s{S_B}
    v_readlane_b32 s{MYF}, v{VF}, s{S_B}
    v_readlane_b32 s{MYN}, v{VNCH}, s{S_B}
    v_readlane_b32 s{X2}, v{VLO}, s{S_B}
    v_readlane_b32 s{X3}, v{VHI}, s{S_B}
    s_lshl_b32 s{X4}, s{S_H}, 8
    s_waitcnt lgkmcnt(0)""")
    for i in range(4):
        g(f"v_lshl_add_u32 v{SO+i}, v{SO+i}, 16, s{X4}")
    g(f"""s_sub_u32 s{X5}, s{X3}, s{X2}
    s_lshr_b32 s{X0}, s{SPM}, s{S_B}
    s_bitcmp1_b32 s{X0}, 0
    s_cselect_b32 s{X0}, 0, 16
    s_bitset1_b32 s{X0}, {B_VALID}
    s_sub_u32 s{X1}, s{MYG}, 1
    v_sub_u32 v{T0}, s{X1}, v{LANE}
    v_cmp_le_i32 {sr(M0_,2)}, {D}, v{T0}
    v_cmp_gt_i32 vcc, s{MYF}, v{T0}
    s_and_b64 {sr(M0_,2)}, {sr(M0_,2)}, vcc
    s_sub_u32 s{X1}, s{X5}, {D}
    v_add_u32 v{POS}, s{X1}, v{T0}
    v_mov_b32 v{CTV}, s{X0}
    v_cmp_le_u32 {sr(M1_,2)}, s{X2}, v{LANE}
    v_cmp_gt_u32 vcc, s{X3}, v{LANE}
    s_and_b64 vcc, {sr(M1_,2)}, vcc
    s_or_b64 {sr(M0_,2)}, {sr(M0_,2)}, vcc
    v_subrev_u32 v{T0}, s{X2}, v{LANE}
    v_mov_b32 v{T1}, {(1 << B_VALID) | (1 << B_SH) | 16}
    v_cndmask_b32 v{POS}, v{POS}, v{T0}, vcc
    v_cndmask_b32 v{CTV}, v{CTV}, v{T1}, vcc
    s_sub_u32 s{X1}, s{X3}, 1
    v_cmp_eq_u32 {sr(M1_,2)}, s{X1}, v{LANE}
    s_and_b64 vcc, {sr(M1_,2)}, vcc
    v_or_b32 v{T1}, {1 << B_POSTSH}, v{CTV}
    v_lshlrev_b32 v{POS}, 5, v{POS}
    v_cndmask_b32 v{CTV}, v{CTV}, v{T1}, vcc
    s_mov_b64 exec, {sr(M0_,2)}
    ds_write_b128 v{POS}, {vr(SO,4)} offset:{L_TAB}
    v_mov_b32 v{CTV+1}, v{CTV}
    v_mov_b32 v{CTV+2}, v{CTV}
    v_mov_b32 v{CTV+3}, v{CTV}
    s_waitcnt lgkmcnt(0)
    ds_write_b128 v{POS}, {vr(CTV,4)} offset:{L_TAB+16}
    s_mov_b64 exec, -1
    s_bcnt1_i32_b64 s{KPUB}, {sr(M0_,2)}
    s_cmp_eq_u32 s{X5}, 0
    s_cselect_b32 s{X0}, 1, 2
    v_mov_b32 v{T0}, s{X0}
    ds_write_b32 v{ZERO}, v{T0} offset:{L_CTL+C_HASSH}
    v_and_b32 v{PRA}, 3, v{LANE}
    v_lshlrev_b32 v{PRA}, 8, v{PRA}
    s_mov_b32 s{NFL}, 0
    s_mov_b32 s{OWNM}, 0
    s_mov_b32 s{NSTEAL}, 0""")
    if o["steal"]:
        g(f"""v_lshrrev_b32 v{T0}, 5, v{LANE}
        v_and_b32 v{T1}, 31, v{LANE}
        v_lshlrev_b32 v{T1}, 4, v{T1}""")
        for i in range(8):
            g(f"""v_add_u32 v{T2}, {2*i}, v{T0}
            v_add_u32 v{T3}, s{GAM}, v{T2}
            v_and_b32 v{T3}, 15, v{T3}
            v_lshl_add_u32 v{T3}, v{T3}, 9, v{T1}
            v_lshl_add_u32 v{T3}, v{T2}, 13, v{T3}
            s_mov_b32 m0, {L_Q+1024*i}
            s_nop 0
            buffer_load_dwordx4 v{T3}, {sr(QSRD,4)}, 0 offen lds""")
        lw = g.lab("wn")
        g(f"""{lw}:
        ds_read_b32 v{T0}, v{ZERO} offset:{L_CTL+C_NONCE}
        s_waitcnt lgkmcnt(0)
        v_readfirstlane_b32 s{TAG}, v{T0}
        s_cmp_eq_u32 s{TAG}, 0
        s_cbranch_scc0 {lw}_ok
        {nap(4)}
        s_branch {lw}
        {lw}_ok:
        s_and_b32 s{TAG}, s{TAG}, 0xffffff00
        s_mul_i32 s{X0}, s{GAM}, {CNT_STRIDE}
        s_add_u32 s{X0}, s{X0}, {WS_CNT}
        s_add_u32 s{CB}, s{P_WS}, s{X0}
        s_addc_u32 s{CB+1}, s{P_WS+1}, 0
        s_lshl2_add_u32 s{X0}, s{S_B}, s{X0}
        s_add_u32 s{X1}, s{MYN}, 64
        s_or_b32 s{X1}, s{X1}, s{TAG}
        v_mov_b32 v{T0}, s{X1}
        s_mov_b64 exec, 1
        buffer_store_dword v{T0}, v{ZERO}, {sr(WSRD,4)}, s{X0} offen sc1
        s_mov_b64 exec, -1
        s_waitcnt vmcnt(0)""")

    def wait_lead():
        lw = g.lab("lead")
        g(f"""{lw}:
        ds_read_b32 v{T0}, v{PRA} offset:{L_PROG}
        s_waitcnt lgkmcnt(0)
        v_and_b32 v{T0}, 0xff, v{T0}
        v_add_u32 v{T0}, {o['lead']}, v{T0}
        v_cmp_le_u32 vcc, s{KPUB}, v{T0}
        s_cbranch_vccnz {lw}_ok
        {nap(2)}
        s_branch {lw}
        {lw}_ok:""")

    def put_ctl_entry(ctrl):
        g(f"""s_lshl_b32 s{X0}, s{KPUB}, 5
        v_mov_b32 v{POS}, s{X0}
        v_mov_b32 v{CTV}, {OOB}
        v_mov_b32 v{CTV+1}, {OOB}
        v_mov_b32 v{CTV+2}, {OOB}
        v_mov_b32 v{CTV+3}, {OOB}
        s_mov_b64 exec, 1
        ds_write_b128 v{POS}, {vr(CTV,4)} offset:{L_TAB}
        s_waitcnt lgkmcnt(0)
        v_mov_b32 v{CTV}, {ctrl}
        v_mov_b32 v{CTV+1}, {ctrl}
        v_mov_b32 v{CTV+2}, {ctrl}
        v_mov_b32 v{CTV+3}, {ctrl}
        ds_write_b128 v{POS}, {vr(CTV,4)} offset:{L_TAB+16}
        s_mov_b64 exec, -1
        s_add_u32 s{KPUB}, s{KPUB}, 1""")

    def emit_chunk(pre):
        g(f"""s_sub_u32 s{X1}, s{X1}, 1
        v_sub_u32 v{T0}, s{X1}, v{LANE}
        v_cmp_le_i32 {sr(M0_,2)}, s{EO0}, v{T0}
        v_cmp_gt_i32 vcc, s{EO1}, v{T0}
        s_and_b64 {sr(M0_,2)}, {sr(M0_,2)}, vcc
        s_sub_u32 s{X1}, s{KPUB}, s{EO0}
        v_add_u32 v{POS}, s{X1}, v{T0}
        v_lshlrev_b32 v{POS}, 5, v{POS}
        v_mov_b32 v{CTV}, s{EFL}""")
        if pre:
            g(f"""v_cmp_eq_u32 vcc, s{EO0}, v{T0}
            v_or_b32 v{T1}, {1 << B_PRE}, v{CTV}
            s_sub_u32 s{X1}, s{EO1}, 1
            v_cndmask_b32 v{CTV}, v{CTV}, v{T1}, vcc
            v_cmp_eq_u32 vcc, s{X1}, v{T0}
            v_or_b32 v{T1}, {1 << B_POST}, v{CTV}
            s_nop 0
            v_cndmask_b32 v{CTV}, v{CTV}, v{T1}, vcc""")
        g(f"""s_mov_b64 exec, {sr(M0_,2)}
        ds_write_b128 v{POS}, {vr(SO,4)} offset:{L_TAB}
        v_mov_b32 v{CTV+1}, v{CTV}
        v_mov_b32 v{CTV+2}, v{CTV}
        v_mov_b32 v{CTV+3}, v{CTV}
        s_waitcnt lgkmcnt(0)
        ds_write_b128 v{POS}, {vr(CTV,4)} offset:{L_TAB+16}
        s_mov_b64 exec, -1
        s_bcnt1_i32_b64 s{X1}, {sr(M0_,2)}
        s_add_u32 s{KPUB}, s{KPUB}, s{X1}""")

    g(f"""s_cmp_eq_u32 s{MYN}, 0
    s_cbranch_scc1 L_own_close""")
    if o["steal"]:
        wait_lead()
        g(f"""s_or_b32 s{X0}, s{SHM}, 0xc0000000
        v_mov_b32 v{T0}, s{X0}
        ds_write_b32 v{ZERO}, v{T0} offset:{L_CTL+C_GO}
        s_lshr_b32 s{X0}, s{SPM}, s{S_B}
        s_bitcmp1_b32 s{X0}, 0
        s_cselect_b32 s{EFL}, 0, 16
        s_bitset1_b32 s{EFL}, {B_VALID}
        L_own_loop:
        s_mov_b32 s{X0}, -1
        s_lshl_b32 s{X1}, s{S_B}, 2
        s_atomic_add s{X0}, {sr(CB,2)}, s{X1} glc
        s_waitcnt lgkmcnt(0)
        s_and_b32 s{X0}, s{X0}, 0xff
        s_sub_i32 s{X5}, s{X0}, 64
        s_cmp_gt_i32 s{X5}, 0
        s_cbranch_scc0 L_own_close
        s_sub_u32 s{X0}, s{MYN}, s{X5}
        s_bitset1_b32 s{OWNM}, s{X0}
        s_lshl_b32 s{X0}, s{X0}, {chs}
        s_add_u32 s{EO0}, s{X0}, s{MYF}
        s_add_u32 s{EO1}, s{EO0}, {o['ch']}
        s_sub_u32 s{X0}, s{MYG}, s{SG}
        s_min_u32 s{EO1}, s{EO1}, s{X0}
        s_mov_b32 s{X1}, s{MYG}""")
        emit_chunk(False)
        g(f"""s_cmp_eq_u32 s{X5}, 1
        s_cbranch_scc1 L_own_close""")
        wait_lead()
        g("s_branch L_own_loop")
    g(f"""L_own_close:
    s_bfm_b64 {sr(M0_,2)}, s{MYN}, 0
    s_andn2_b32 s{M0_}, s{M0_}, s{OWNM}
    s_mov_b32 s{M0_+1}, 0
    s_lshl_b64 {sr(M0_,2)}, {sr(M0_,2)}, 16
    s_or_b32 s{M0_}, s{M0_}, s{SHM}
    s_lshl_b32 s{X0}, s{S_H}, 4
    s_add_u32 s{X0}, s{X0}, s{S_B}
    v_mov_b32 v{CTV}, s{X0}
    v_mov_b32 v{CTV+1}, 0
    v_mov_b32 v{CTV+2}, s{M0_}
    v_mov_b32 v{CTV+3}, s{M0_+1}
    ds_write_b128 v{ZERO}, {vr(CTV,4)} offset:{L_CTL+C_META}
    s_mov_b32 s{NFL}, 1
    s_waitcnt lgkmcnt(0)""")
    put_ctl_entry(CT_NULL | (1 << B_POST))
    if not o["steal"]:
        wait_lead()
        g(f"""s_or_b32 s{X0}, s{SHM}, 0xc0000000
        v_mov_b32 v{T0}, s{X0}
        ds_write_b32 v{ZERO}, v{T0} offset:{L_CTL+C_GO}""")
    if o["steal"]:
        g(f"""L_steal_loop:
        s_mov_b32 s{TRY}, 0
        s_cmp_ge_u32 s{KPUB}, {NTAB - 8}
        s_cbranch_scc1 L_sched_end""")
        wait_lead()
        g(f"""s_or_b32 s{X0}, s{SHM}, 0xc0000000
        v_mov_b32 v{T0}, s{X0}
        ds_write_b32 v{ZERO}, v{T0} offset:{L_CTL+C_GO}""")
        lw = g.lab("slot")
        g(f"""{lw}:
        ds_read_b32 v{T0}, v{ZERO} offset:{L_CTL+C_RDONE}
        s_waitcnt lgkmcnt(0)
        v_readfirstlane_b32 s{X0}, v{T0}
        s_sub_u32 s{X0}, s{NFL}, s{X0}
        s_cmp_lt_u32 s{X0}, 4
        s_cbranch_scc1 L_scan
        {nap(2)}
        s_branch {lw}
        L_scan:
        s_load_dwordx16 {sr(CX,16)}, {sr(CB,2)}, 0 glc
        s_mov_b32 s{X5}, 0
        s_waitcnt lgkmcnt(0)""")
        for i in range(16):
            g(f"""s_lshl_b32 s{X0}, s{CX+i}, 24
            s_xor_b32 s{X1}, s{S_B}, {i}
            s_or_b32 s{X0}, s{X0}, s{X1}
            s_max_u32 s{X5}, s{X5}, s{X0}""")
        g(f"""s_lshr_b32 s{X0}, s{X5}, 24
        s_cmp_lt_u32 s{X0}, {64 + o['minrem']}
        s_cbranch_scc1 L_sched_end
        s_and_b32 s{EB}, s{X5}, 15
        s_xor_b32 s{EB}, s{EB}, s{S_B}
        s_mov_b32 s{X0}, -1
        s_lshl_b32 s{X1}, s{EB}, 2
        s_atomic_add s{X0}, {sr(CB,2)}, s{X1} glc
        s_lshl_b32 s{X1}, s{EB}, 10
        v_add_u32 v{T0}, s{X1}, v{A16}
        ds_read_b128 {vr(SO,4)}, v{T0} offset:{L_BT}
        v_readlane_b32 s{X2}, v{VG}, s{EB}
        v_readlane_b32 s{X3}, v{VF}, s{EB}
        v_readlane_b32 s{X4}, v{VNCH}, s{EB}
        s_add_u32 s{EH}, s{GAM}, s{EB}
        s_and_b32 s{EH}, s{EH}, 15
        s_waitcnt lgkmcnt(0)
        s_xor_b32 s{X0}, s{X0}, s{TAG}
        s_sub_u32 s{X5}, s{X0}, 65
        s_cmp_lt_u32 s{X5}, s{X4}
        s_cbranch_scc1 L_stolen
        s_add_u32 s{TRY}, s{TRY}, 1
        s_cmp_lt_u32 s{TRY}, 4
        s_cbranch_scc1 L_scan
        s_branch L_sched_end
        L_stolen:
        s_add_u32 s{NSTEAL}, s{NSTEAL}, 1
        s_sub_u32 s{X0}, s{X4}, s{X5}
        s_sub_u32 s{X0}, s{X0}, 1
        s_add_u32 s{X5}, s{X0}, 16
        s_lshl_b32 s{X0}, s{X0}, {chs}
        s_add_u32 s{EO0}, s{X0}, s{X3}
        s_add_u32 s{EO1}, s{EO0}, {o['ch']}
        s_sub_u32 s{X0}, s{X2}, s{SG}
        s_min_u32 s{EO1}, s{EO1}, s{X0}
        s_lshl_b32 s{X0}, s{EH}, 4
        s_add_u32 s{X0}, s{X0}, s{EB}
        v_mov_b32 v{CTV}, s{X0}
        v_mov_b32 v{CTV+1}, s{X5}
        s_and_b32 s{X0}, s{NFL}, 3
        s_lshl_b32 s{X0}, s{X0}, 4
        v_mov_b32 v{T0}, s{X0}
        ds_write_b64 v{T0}, {vr(CTV,2)} offset:{L_CTL+C_META}
        s_add_u32 s{NFL}, s{NFL}, 1
        s_lshl_b32 s{X0}, s{EH}, 8""")
        for i in range(4):
            g(f"v_lshl_add_u32 v{SO+i}, v{SO+i}, 16, s{X0}")
        g(f"""s_lshr_b32 s{X0}, s{SPM}, s{EB}
        s_bitcmp1_b32 s{X0}, 0
        s_cselect_b32 s{EFL}, 0, 16
        s_bitset1_b32 s{EFL}, {B_VALID}
        s_lshl_b32 s{X0}, s{EB}, 12
        s_or_b32 s{EFL}, s{EFL}, s{X0}
        s_mov_b32 s{X1}, s{X2}
        s_waitcnt lgkmcnt(0)""")
        emit_chunk(True)
        g("s_branch L_steal_loop")
    g("L_sched_end:")
    put_ctl_entry(CT_NULL | (1 << B_END))
    g(f"""s_add_u32 s{X0}, s{NFL}, 1
    v_mov_b32 v{T0}, s{X0}
    ds_write_b32 v{ZERO}, v{T0} offset:{L_CTL+C_TOTAL}
    s_waitcnt lgkmcnt(0)""")
    stamp_end(g, f"s{NSTEAL}", f"s{OWNM}")
    g("s_endpgm")


def reducer(g):
    o = g.opt
    LANE = 1
    A16, ZERO, PRA, T0, T1, T2, T3, OUTA, LA, UA = 2, 3, 4, 5, 6, 7, 8, 9, 10, 11
    CTL = 12
    OW = 16
    ML = 32
    GA = 48
    RM, RW, RO = 56, 58, 60
    XM, XW, XO = 64, 66, 68
    RB = 72
    META = 104
    PK = 108
    ODD = 76
    WSRD, OSRD, DSRD = 32, 36, 40
    TAG, DONE, SHST, OWNST, GOT, X0, X1, X2, X3, STR = 44, 45, 46, 47, 48, 50, 51, 52, 53, 54
    MISS = 56
    TODO = 58
    SL = 60
    RET = 64
    RET2 = 65
    OWNS = 66
    SAVE = 68
    LATE = 70
    SPIN, NFB, ABS = 72, 73, 74

    g("L_red:")
    g(f"""v_lshlrev_b32 v{A16}, 4, v{LANE}
    v_mov_b32 v{ZERO}, 0
    s_memrealtime {sr(X0,2)}
    s_waitcnt lgkmcnt(0)""")
    srd(g, DSRD, P_DBG, 256)
    g(f"s_or_b32 s{TAG}, s{X0}, 1")
    srd(g, WSRD, P_WS, WSB)
    srd(g, OSRD, P_OUT, 131072)
    g(f"""v_and_b32 v{PRA}, 3, v{LANE}
    v_lshlrev_b32 v{PRA}, 8, v{PRA}
    v_and_b32 v{T0}, 15, v{LANE}
    v_lshrrev_b32 v{T3}, 4, v{LANE}
    v_lshlrev_b32 v{T0}, 4, v{T0}
    v_lshl_add_u32 v{OUTA}, v{T3}, 2, v{T0}
    v_mov_b32 v{RM}, {NEG_BIG:#x}
    v_mov_b32 v{RM+1}, {NEG_BIG:#x}
    v_mov_b32 v{RW}, 0
    v_mov_b32 v{RW+1}, 0
    v_mov_b32 v{RO}, 0
    v_mov_b32 v{RO+1}, 0
    v_mov_b32 v{RO+2}, 0
    v_mov_b32 v{RO+3}, 0
    s_mov_b32 s{DONE}, 0
    s_mov_b32 s{ODD}, 0xaaaaaaaa
    s_mov_b32 s{ODD+1}, 0xaaaaaaaa
    s_mov_b32 s{SHST}, 0
    s_mov_b32 s{OWNST}, 0
    s_mov_b32 s{ABS}, 0
    s_mov_b32 s{SPIN}, 0
    s_mov_b32 s{NFB}, 0
    s_mov_b64 {sr(GOT,2)}, 0
    s_lshl_b32 s{OWNS}, s{S_H}, 4
    s_add_u32 s{OWNS}, s{OWNS}, s{S_B}
    s_barrier
    s_cmp_eq_u32 s2, 0
    s_cbranch_scc1 L_r_cas
    L_r_wsch:
    ds_read_b32 v{T0}, v{ZERO} offset:{L_CTL+C_HASSH}
    s_waitcnt lgkmcnt(0)
    v_cmp_eq_u32 vcc, 0, v{T0}
    s_cbranch_vccz L_r_look
    {nap(4)}
    s_branch L_r_wsch
    L_r_look:
    s_load_dword s{X0}, {sr(P_DBG,2)}, 0
    s_waitcnt lgkmcnt(0)
    s_cmp_lg_u32 s{X0}, 0
    s_cbranch_scc1 L_r_tag
    L_r_cas:
    v_mov_b32 v{T1}, s{TAG}
    v_mov_b32 v{T2}, 0
    s_mov_b64 exec, 1
    buffer_atomic_cmpswap {vr(T1,2)}, v{ZERO}, {sr(DSRD,4)}, 0 offen sc0
    s_mov_b64 exec, -1
    s_add_u32 s{NFB}, s{NFB}, 0x10000
    s_waitcnt vmcnt(0)
    v_readfirstlane_b32 s{X0}, v{T1}
    L_r_tag:
    s_cmp_eq_u32 s{X0}, 0
    s_cselect_b32 s{TAG}, s{TAG}, s{X0}
    v_mov_b32 v{T0}, s{TAG}
    ds_write_b32 v{ZERO}, v{T0} offset:{L_CTL+C_NONCE}""")

    def merge4(stride):
        for w in range(4):
            g(f"ds_read_b128 {vr(ML+4*w,4)}, v{UA} offset:{1024+w*stride}")
        for w in range(4):
            g(f"ds_read_b128 {vr(OW+4*w,4)}, v{LA} offset:{w*stride}")
        g("s_waitcnt lgkmcnt(4)")
        for q in range(2):
            g(f"""v_max3_f32 v{T0+q}, v{ML+2*q}, v{ML+4+2*q}, v{ML+8+2*q}
            v_max_f32 v{T0+q}, v{T0+q}, v{ML+12+2*q}""")
        for w in range(4):
            for q in range(2):
                g(f"v_sub_f32 v{ML+4*w+2*q}, v{ML+4*w+2*q}, v{T0+q}")
        for w in range(4):
            for q in range(2):
                g(f"v_exp_f32 v{ML+4*w+2*q}, v{ML+4*w+2*q}")
        g("s_nop 0")
        for q in range(2):
            g(f"v_mul_f32 v{T2+q}, v{ML+2*q}, v{ML+2*q+1}")
        for w in range(1, 4):
            for q in range(2):
                g(f"v_fmac_f32 v{T2+q}, v{ML+4*w+2*q}, v{ML+4*w+2*q+1}")
        g("s_waitcnt lgkmcnt(0)")
        for r in range(4):
            d = GA + 4 * (r & 1) + (r >> 1)
            g(f"v_mul_f32 v{d}, v{ML+2*(r&1)}, v{OW+r}")
        for w in range(1, 4):
            for r in range(4):
                d = GA + 4 * (r & 1) + (r >> 1)
                g(f"v_fmac_f32 v{d}, v{ML+4*w+2*(r&1)}, v{OW+4*w+r}")
        g(f"""v_log_f32 v{GA+2}, v{T2}
        v_log_f32 v{GA+6}, v{T3}
        v_rcp_f32 v{T2}, v{T2}
        v_rcp_f32 v{T3}, v{T3}
        s_nop 0
        v_add_f32 v{GA+2}, v{GA+2}, v{T0}
        v_add_f32 v{GA+6}, v{GA+6}, v{T1}
        v_mul_f32 v{GA}, v{GA}, v{T2}
        v_mul_f32 v{GA+1}, v{GA+1}, v{T2}
        v_mul_f32 v{GA+4}, v{GA+4}, v{T3}
        v_mul_f32 v{GA+5}, v{GA+5}, v{T3}""")

    def fold(b):
        for q in range(2):
            g(f"v_max_f32 v{T0+q}, v{RM+q}, v{b+4*q+2}")
        for q in range(2):
            g(f"""v_sub_f32 v{T2+q}, v{RM+q}, v{T0+q}
            v_sub_f32 v{b+4*q+2}, v{b+4*q+2}, v{T0+q}""")
        for q in range(2):
            g(f"""v_exp_f32 v{T2+q}, v{T2+q}
            v_exp_f32 v{b+4*q+2}, v{b+4*q+2}""")
        for q in range(2):
            g(f"v_mov_b32 v{RM+q}, v{T0+q}")
        for q in range(2):
            g(f"""v_fma_f32 v{RW+q}, v{RW+q}, v{T2+q}, v{b+4*q+2}
            v_mul_f32 v{RO+2*q}, v{RO+2*q}, v{T2+q}
            v_mul_f32 v{RO+2*q+1}, v{RO+2*q+1}, v{T2+q}
            v_fmac_f32 v{RO+2*q}, v{b+4*q+2}, v{b+4*q}
            v_fmac_f32 v{RO+2*q+1}, v{b+4*q+2}, v{b+4*q+1}""")

    def delay():
        for _ in range(o["delay_pub"]):
            g("s_sleep 127")

    def store_rec(sreg_off):
        g(f"""v_cvt_pk_bf16_f32 v{PK}, v{GA}, v{GA+1}
        v_cvt_pk_bf16_f32 v{PK+1}, v{GA+4}, v{GA+5}
        v_cndmask_b32 v{PK+2}, v{GA+2}, v{GA+6}, {sr(ODD,2)}
        v_mov_b32 v{PK+3}, s{TAG}""")
        if o["nopub"] or o["abl"] & 2:
            return
        g(f"buffer_store_dwordx4 {vr(PK,4)}, v{A16}, {sr(WSRD,4)}, s{sreg_off} offen {o['stpol'].replace('_',' ')}")

    def unpack(b):
        g(f"""v_lshlrev_b32 v{GA}, 16, v{b}
        v_and_b32 v{GA+1}, 0xffff0000, v{b}
        v_lshlrev_b32 v{GA+4}, 16, v{b+1}
        v_and_b32 v{GA+5}, 0xffff0000, v{b+1}
        v_mov_b32_dpp v{GA+2}, v{b+2} quad_perm:[0,0,2,2] row_mask:0xf bank_mask:0xf
        v_mov_b32_dpp v{GA+6}, v{b+2} quad_perm:[1,1,3,3] row_mask:0xf bank_mask:0xf""")

    rets = []

    def call_absorb():
        i = len(rets)
        rets.append(i)
        g(f"""s_mov_b32 s{RET}, {i}
        s_branch L_absorb
        L_absret{i}:""")

    rets2 = []

    def call_late():
        i = len(rets2)
        rets2.append(i)
        g(f"""s_mov_b32 s{RET2}, {i}
        s_branch L_late
        L_lateret{i}:""")

    def write_out():
        g(f"""v_rcp_f32 v{T0}, v{RW}
        v_rcp_f32 v{T1}, v{RW+1}
        s_and_b32 s{X0}, s{STR}, 15
        s_lshl_b32 s{X0}, s{X0}, 13
        s_lshr_b32 s{X1}, s{STR}, 4
        s_lshl_b32 s{X1}, s{X1}, 9
        s_add_u32 s{X0}, s{X0}, s{X1}
        v_mul_f32 v{RO}, v{RO}, v{T0}
        v_mul_f32 v{RO+1}, v{RO+1}, v{T0}
        v_mul_f32 v{RO+2}, v{RO+2}, v{T1}
        v_mul_f32 v{RO+3}, v{RO+3}, v{T1}
        v_cvt_pk_bf16_f32 v{T0}, v{RO}, v{RO+1}
        v_cvt_pk_bf16_f32 v{T1}, v{RO+2}, v{RO+3}
        buffer_store_dword v{T0}, v{OUTA}, {sr(OSRD,4)}, s{X0} offen
        buffer_store_dword v{T1}, v{OUTA}, {sr(OSRD,4)}, s{X0} offen offset:256""")

    g(f"""L_rloop:
    ds_read_b32 v{T0}, v{PRA} offset:{L_PROG}
    ds_read_b128 {vr(CTL,4)}, v{ZERO} offset:{L_CTL}
    ds_read_b32 v{T1}, v{ZERO} offset:{L_CTL+C_HASSH}
    s_waitcnt lgkmcnt(0)
    v_bfe_u32 v{T2}, v{T0}, 8, 8
    v_cmp_ge_u32 vcc, s{DONE}, v{T2}
    s_cbranch_vccz L_r_flush
    s_cmp_lg_u32 s{SHST}, 0
    s_cbranch_scc1 L_r_nosh
    v_readfirstlane_b32 s{X0}, v{T1}
    s_cmp_eq_u32 s{X0}, 1
    s_cselect_b32 s{SHST}, 1, 0
    v_and_b32 v{T2}, 0x10000, v{T0}
    v_cmp_eq_u32 vcc, 0, v{T2}
    s_cbranch_vccz L_r_shared
    L_r_nosh:
    s_cmp_eq_u32 s{OWNST}, 1
    s_cbranch_scc1 L_r_retry
    s_cmp_lg_u32 s{ABS}, 0
    s_cbranch_scc1 L_r_noabs
    v_readfirstlane_b32 s{X0}, v{CTL+1}
    s_cmp_lg_u32 s{X0}, 0
    s_cbranch_scc1 L_r_early
    L_r_noabs:
    v_readfirstlane_b32 s{X0}, v{CTL+2}
    s_add_u32 s{X1}, s{DONE}, 1
    s_cmp_eq_u32 s{X0}, s{X1}
    s_cbranch_scc0 L_r_sleep
    s_cmp_lg_u32 s{SHST}, 0
    s_cbranch_scc1 L_red_done
    L_r_sleep:
    {nap(1)}
    s_branch L_rloop""")

    g(f"""L_r_early:
    s_mov_b32 s{ABS}, 1
    s_and_b32 s{MISS}, s{X0}, 0xffff
    s_mov_b32 s{MISS+1}, 0
    s_mov_b64 {sr(GOT,2)}, {sr(MISS,2)}
    s_mov_b32 s{STR}, s{OWNS}""")
    call_absorb()
    g(f"""s_andn2_b64 {sr(GOT,2)}, {sr(GOT,2)}, {sr(MISS,2)}
    s_branch L_rloop""")

    g(f"""L_r_shared:
    s_mov_b32 s{SHST}, 1
    s_mov_b32 s{X2}, 0
    v_add_u32 v{LA}, {L_SD}, v{A16}
    v_mov_b32 v{UA}, {L_SD}
    s_lshl_b32 s{X3}, s{S_B}, 4
    s_add_u32 s{X3}, s{X3}, s{S_H}
    s_lshl_b32 s{X3}, s{X3}, 14""")
    delay()
    g("L_r_shl:")
    merge4(16 * REC)
    store_rec(X3)
    g(f"""s_add_u32 s{X3}, s{X3}, 1024
    v_add_u32 v{LA}, {REC}, v{LA}
    v_add_u32 v{UA}, {REC}, v{UA}
    s_add_u32 s{X2}, s{X2}, 1
    s_cmp_lt_u32 s{X2}, 16
    s_cbranch_scc1 L_r_shl
    s_waitcnt vmcnt(0)
    v_and_b32 v{T0}, 15, v{LANE}
    v_lshlrev_b32 v{T0}, 4, v{T0}
    s_lshl_b32 s{X3}, s{S_H}, 8
    s_add_u32 s{X3}, s{X3}, {WS_MARK}
    {"v_mov_b32 v%d, 0" % T1 if o["abl"] & 16 else "buffer_load_dword v%d, v%d, %s, s%d offen offset:12 sc1" % (T1, T0, sr(WSRD,4), X3)}
    s_waitcnt vmcnt(0)
    v_cmp_eq_u32 vcc, s{TAG}, v{T1}
    s_and_b32 s{LATE}, vcc_lo, 0xffff
    L_r_shlate:
    s_cmp_eq_u32 s{LATE}, 0
    s_cbranch_scc1 L_rloop
    s_ff1_i32_b32 s{X0}, s{LATE}
    s_bitset0_b32 s{LATE}, s{X0}
    s_lshl_b32 s{STR}, s{S_H}, 4
    s_add_u32 s{STR}, s{STR}, s{X0}""")
    call_late()
    g("s_branch L_r_shlate")

    g(f"""L_r_flush:
    s_and_b32 s{X0}, s{DONE}, 3
    s_lshl_b32 s{X1}, s{X0}, 4
    v_mov_b32 v{T0}, s{X1}
    ds_read_b128 {vr(META,4)}, v{T0} offset:{L_CTL+C_META}
    s_mul_i32 s{X0}, s{X0}, {4*REC}
    s_add_u32 s{X0}, s{X0}, {L_PD}
    v_add_u32 v{LA}, s{X0}, v{A16}
    v_mov_b32 v{UA}, s{X0}""")
    merge4(REC)
    g(f"""s_add_u32 s{DONE}, s{DONE}, 1
    v_mov_b32 v{T0}, s{DONE}
    ds_write_b32 v{ZERO}, v{T0} offset:{L_CTL+C_RDONE}
    v_readfirstlane_b32 s{X0}, v{META+1}
    v_readfirstlane_b32 s{X1}, v{META}
    s_cmp_eq_u32 s{X0}, 0
    s_cbranch_scc1 L_r_own
    s_lshl_b32 s{X3}, s{X0}, 8
    s_add_u32 s{X3}, s{X3}, s{X1}
    s_lshl_b32 s{X3}, s{X3}, 10""")
    delay()
    store_rec(X3)
    g(f"""s_mov_b32 s{STR}, s{X1}
    s_lshl_b32 s{X3}, s{X1}, 4
    s_add_u32 s{X3}, s{X3}, {WS_MARK}
    s_waitcnt vmcnt(0)
    {"v_mov_b32 v%d, 0" % T1 if o["abl"] & 16 else "buffer_load_dword v%d, v%d, %s, s%d offen offset:12 sc1" % (T1, ZERO, sr(WSRD,4), X3)}
    s_waitcnt vmcnt(0)
    v_cmp_eq_u32 vcc, s{TAG}, v{T1}
    s_cbranch_vccz L_rloop""")
    call_late()
    g("s_branch L_rloop")

    g(f"""L_r_own:
    v_readfirstlane_b32 s{MISS}, v{META+2}
    v_readfirstlane_b32 s{MISS+1}, v{META+3}
    s_mov_b32 s{ABS}, 1
    s_mov_b32 s{OWNST}, 1
    s_andn2_b64 {sr(MISS,2)}, {sr(MISS,2)}, {sr(GOT,2)}""")
    fold(GA)
    g(f"""L_r_retry:
    s_mov_b32 s{STR}, s{OWNS}""")
    if not o["force_fallback"]:
        call_absorb()
        g(f"""s_cmp_eq_u64 {sr(MISS,2)}, 0
        s_cbranch_scc1 L_r_fin
        ds_read_b32 v{T0}, v{ZERO} offset:{L_CTL+C_TOTAL}
        s_add_u32 s{X1}, s{DONE}, 1
        s_waitcnt lgkmcnt(0)
        v_readfirstlane_b32 s{X0}, v{T0}
        s_cmp_eq_u32 s{X0}, s{X1}
        s_cbranch_scc0 L_r_sleep
        s_cmp_eq_u32 s{SHST}, 0
        s_cbranch_scc1 L_r_sleep
        s_add_u32 s{SPIN}, s{SPIN}, 1
        s_cmp_lt_u32 s{SPIN}, {o['spin']}
        s_cbranch_scc1 L_rloop""")
    g(f"""s_add_u32 s{NFB}, s{NFB}, 1
    v_log_f32 v{GA+2}, v{RW}
    v_log_f32 v{GA+6}, v{RW+1}
    v_rcp_f32 v{T2}, v{RW}
    v_rcp_f32 v{T3}, v{RW+1}
    s_nop 0
    v_add_f32 v{GA+2}, v{GA+2}, v{RM}
    v_add_f32 v{GA+6}, v{GA+6}, v{RM+1}
    v_mul_f32 v{GA}, v{RO}, v{T2}
    v_mul_f32 v{GA+1}, v{RO+1}, v{T2}
    v_mul_f32 v{GA+4}, v{RO+2}, v{T3}
    v_mul_f32 v{GA+5}, v{RO+3}, v{T3}
    s_lshl_b32 s{X2}, s{OWNS}, 10
    s_add_u32 s{X2}, s{X2}, {SLOT_OWN*256*1024}
    s_lshl_b32 s{X3}, s{OWNS}, 4
    s_add_u32 s{X3}, s{X3}, {WS_MARK}""")
    store_rec(X2)
    g(f"""v_mov_b32 v{META}, s{MISS}
    v_mov_b32 v{META+1}, s{MISS+1}
    v_mov_b32 v{META+2}, 0
    v_mov_b32 v{META+3}, s{TAG}
    s_waitcnt vmcnt(0)
    s_mov_b64 exec, 1
    buffer_store_dwordx4 {vr(META,4)}, v{ZERO}, {sr(WSRD,4)}, s{X3} offen sc1
    s_mov_b64 exec, -1
    s_waitcnt vmcnt(0)""")
    call_absorb()
    g(f"""s_mov_b32 s{OWNST}, 2
    s_cmp_eq_u64 {sr(MISS,2)}, 0
    s_cbranch_scc0 L_rloop
    L_r_fin:
    s_mov_b32 s{OWNST}, 2""")
    write_out()
    g("s_branch L_rloop")

    g(f"""L_late:
    s_mov_b64 {sr(SAVE,2)}, {sr(MISS,2)}""")
    for i in range(8):
        g(f"v_mov_b32 v{XM+i}, v{RM+i}")
    g(f"""s_lshl_b32 s{X3}, s{STR}, 4
    s_add_u32 s{X3}, s{X3}, {WS_MARK}
    buffer_load_dwordx4 {vr(META,4)}, v{ZERO}, {sr(WSRD,4)}, s{X3} offen sc1
    v_mov_b32 v{RM}, {NEG_BIG:#x}
    v_mov_b32 v{RM+1}, {NEG_BIG:#x}""")
    for i in range(2, 8):
        g(f"v_mov_b32 v{RM+i}, 0")
    g(f"""s_waitcnt vmcnt(0)
    v_readfirstlane_b32 s{MISS}, v{META}
    v_readfirstlane_b32 s{MISS+1}, v{META+1}
    s_bitset1_b32 s{MISS+1}, {SLOT_OWN-32}""")
    call_absorb()
    g(f"""s_cmp_eq_u64 {sr(MISS,2)}, 0
    s_cbranch_scc0 L_late_out""")
    write_out()
    g(f"""L_late_out:
    s_mov_b64 {sr(MISS,2)}, {sr(SAVE,2)}""")
    for i in range(8):
        g(f"v_mov_b32 v{RM+i}, v{XM+i}")
    for i in rets2[:-1]:
        g(f"""s_cmp_eq_u32 s{RET2}, {i}
        s_cbranch_scc1 L_lateret{i}""")
    g(f"s_branch L_lateret{rets2[-1]}")

    g("L_absorb:")
    if o["abl"] & 4:
        g(f"s_mov_b64 {sr(MISS,2)}, 0")
    g(f"""s_mov_b64 {sr(TODO,2)}, {sr(MISS,2)}
    L_abs_loop:
    s_cmp_eq_u64 {sr(TODO,2)}, 0
    s_cbranch_scc1 L_abs_done
    s_lshl_b32 s{X3}, s{STR}, 10""")
    for i in range(4):
        g(f"""s_ff1_i32_b64 s{SL+i}, {sr(TODO,2)}
        s_lshl_b32 s{X0}, s{SL+i}, 18
        s_add_u32 s{X0}, s{X0}, s{X3}
        s_cmp_lt_i32 s{SL+i}, 0
        s_cselect_b32 s{X0}, {OOB}, s{X0}
        s_max_i32 s{X1}, s{SL+i}, 0
        s_bitset0_b64 {sr(TODO,2)}, s{X1}
        buffer_load_dwordx4 {vr(RB+4*i,4)}, v{A16}, {sr(WSRD,4)}, s{X0} offen {o['ldpol'].replace('_',' ')}""")
    for i in range(4):
        g(f"""s_waitcnt vmcnt({3-i})
        v_cmp_ne_u32 vcc, s{TAG}, v{RB+4*i+3}
        s_cbranch_vccnz L_abs_skip{i}
        s_bitset0_b64 {sr(MISS,2)}, s{SL+i}""")
        unpack(RB + 4 * i)
        fold(GA)
        g(f"L_abs_skip{i}:")
    g("""s_branch L_abs_loop
    L_abs_done:""")
    for i in rets[:-1]:
        g(f"""s_cmp_eq_u32 s{RET}, {i}
        s_cbranch_scc1 L_absret{i}""")
    g(f"s_branch L_absret{rets[-1]}")

    g("L_red_done:")
    stamp_end(g, f"s{NFB}", f"s{SPIN}")
    g("s_endpgm")


def build(**opt):
    g = G(**opt)
    NAPX[0] = g.opt["napx"]
    g.o.append(HEADER.rstrip("\n"))
    g.o.append(f"; @launch grid=(256,1,1) block=(384,1,1) lds={LDS_BYTES}")
    g.o.append('.amdgcn_target "amdgcn-amd-amdhsa--gfx950"')
    g.o.append(".text")
    g.o.append(f".globl {KN}")
    g.o.append(".p2align 8")
    g.o.append(f".type {KN},@function")
    g(f"{KN}:")
    if g.opt["stamp"]:
        g("s_memrealtime s[96:97]")
    g(f"""s_cmp_ge_u32 s2, 256
    s_cbranch_scc1 L_exit
    s_load_dwordx16 s[16:31], s[0:1], 0
    v_lshrrev_b32 v2, 6, v0
    v_and_b32 v1, 63, v0
    v_readfirstlane_b32 s{S_WAVE}, v2
    s_mov_b32 s{S_FUEL}, 0x20000""")
    if g.opt["mapping"] == "head":
        g(f"""s_and_b32 s{S_H}, s2, 15
        s_lshr_b32 s{S_B}, s2, 4""")
    else:
        g(f"""s_and_b32 s{S_B}, s2, 15
        s_lshr_b32 s{S_H}, s2, 4""")
    g(f"""s_cmp_eq_u32 s{S_WAVE}, 4
    s_cbranch_scc1 L_sched
    s_cmp_eq_u32 s{S_WAVE}, 5
    s_cbranch_scc1 L_red""")
    nv = streaming(g)
    scheduler(g)
    reducer(g)
    g("""L_exit:
    s_endpgm""")
    g.o.append('.section .rodata,"a"')
    g.o.append(".p2align 6")
    g.o.append(f".amdhsa_kernel {KN}")
    g.o.append(f"  .amdhsa_next_free_vgpr {nv}")
    g.o.append("  .amdhsa_next_free_sgpr 102")
    g.o.append(f"  .amdhsa_accum_offset {(nv + 3) // 4 * 4}")
    g.o.append("  .amdhsa_group_segment_fixed_size 0")
    g.o.append("  .amdhsa_kernarg_size 64")
    g.o.append("  .amdhsa_user_sgpr_count 2")
    g.o.append("  .amdhsa_user_sgpr_kernarg_segment_ptr 1")
    g.o.append("  .amdhsa_system_sgpr_workgroup_id_x 1")
    g.o.append(".end_amdhsa_kernel")
    return "\n".join(g.o) + "\n"


if __name__ == "__main__":
    out = sys.argv[1]
    opt = {}
    for a in sys.argv[2:]:
        k, v = a.split("=")
        opt[k] = int(v) if v.lstrip("-").isdigit() else v
    open(out, "w").write(build(**opt))
    print(out, "lds", LDS_BYTES)
```
